```python
import torch

def _softmax(x, axis=-1):
    return torch.softmax(x, dim=axis)
def _gelu(x):
    return torch.nn.functional.gelu(x, approximate="tanh")
def _silu(x):
    return torch.nn.functional.silu(x)
def _sigmoid(x):
    return torch.sigmoid(x)
def _layernorm(x, axis=-1, eps=1e-5):
    m = x.mean(dim=axis, keepdim=True)
    v = x.var(dim=axis, keepdim=True, unbiased=False)
    return (x - m) / torch.sqrt(v + eps)
def _scatter_add(tgt, idx, src, axis=0):
    return tgt.clone().index_add_(axis, idx, src)
def _segment_sum(src, seg, n):
    out = torch.zeros((n,) + src.shape[1:], dtype=src.dtype)
    return out.index_add_(0, seg, src)
def _pad(x, pw):
    flat = tuple(v for pair in reversed(pw) for v in pair)
    return torch.nn.functional.pad(x, flat)

kernel_name = 'sequential_preLN__ssm_conv_h3__mixer_channel_mlp__prompt'

def setup_inputs():

    _w = (lambda a: (lambda t: t.to(torch.bfloat16) if t.is_floating_point() else t)(torch.as_tensor(a)))
    def _A_setup():
        B, S, D = 1, 2048, 512
        ks = 4
        return {
            "q": _w((lambda *s: torch.randn(*s, dtype=torch.bfloat16) * 0.05)(B, S, D)),
            "k": _w((lambda *s: torch.randn(*s, dtype=torch.bfloat16) * 0.2)(B, S, D)),
            "v": _w((lambda *s: torch.randn(*s, dtype=torch.bfloat16) * 0.2)(B, S, D)),
            "shift_k": _w((lambda *s: torch.randn(*s, dtype=torch.bfloat16) * 0.2)(D, ks) * 0.5),
            "ssm_k": _w((lambda *s: torch.randn(*s, dtype=torch.bfloat16) * 0.8)(D, S) * (1.0 / S ** 0.5)),
            "ssm_D": _w((lambda *s: torch.randn(*s, dtype=torch.bfloat16) * 0.2)(D)),
        }
    _A_in = _A_setup()

    def _B_setup():
        B, S, D, F = 1, 2048, 512, 1792
        return {
            "x": _w((lambda *s: torch.randn(*s, dtype=torch.bfloat16) * 0.05)(B, S, D)),
            "w1": _w((lambda *s: torch.randn(*s, dtype=torch.bfloat16) * 0.8)(D, F) * (D ** -0.5)),
            "b1": _w((lambda *s: torch.randn(*s, dtype=torch.bfloat16) * 0.4)(F)),
            "w2": _w((lambda *s: torch.randn(*s, dtype=torch.bfloat16) * 0.05)(F, D) * (F ** -0.5)),
            "b2": _w((lambda *s: torch.randn(*s, dtype=torch.bfloat16) * 0.05)(D)),
        }
    _B_in = _B_setup()

    return {
        "A_q": _A_in["q"],
        "A_k": _A_in["k"],
        "A_v": _A_in["v"],
        "A_shift_k": _A_in["shift_k"],
        "A_ssm_k": _A_in["ssm_k"],
        "A_ssm_D": _A_in["ssm_D"],
        "B_x": _B_in["x"],
        "B_w1": _B_in["w1"],
        "B_b1": _B_in["b1"],
        "B_w2": _B_in["w2"],
        "B_b2": _B_in["b2"],
    }

def reference(A_q, A_k, A_v, A_shift_k, A_ssm_k, A_ssm_D, B_x, B_w1, B_b1, B_w2, B_b2):
    def _A_ref(q, k, v, shift_k, ssm_k, ssm_D):
        B, S, D = q.shape
        ks = shift_k.shape[-1]
        k_pad = _pad(k, ((0, 0), (ks - 1, 0), (0, 0)))
        k_shift = torch.zeros_like(k)
        for t in range(ks):
            k_shift = k_shift + k_pad[:, t:t + S, :] * shift_k[:, ks - 1 - t][None, None, :]
        kv = k_shift * v
        L = 2 * S
        kv_pad = _pad(kv, ((0, 0), (0, S), (0, 0)))
        kf_pad = _pad(ssm_k, ((0, 0), (0, S)))
        kv_f = (lambda x, axes=(-2,-1): torch.fft.rfft2(x.float(), dim=axes))(kv_pad[:, None, :, :], axes=(1, 2))
        kf_f = (lambda x, axes=(-2,-1): torch.fft.rfft2(x.float(), dim=axes))(kf_pad[:, None, :], axes=(1, 2))
        kf_f = (lambda x, *d: x.permute(*d))(kf_f, 1, 2, 0)
        y_f = kv_f * kf_f[None, :, :, :]
        y = (lambda x, s, axes=(-2,-1): torch.fft.irfft2(x, s=s, dim=axes).to(torch.bfloat16))(y_f, (1, L), axes=(1, 2))[:, 0, :S, :]
        y = y + kv * ssm_D[None, None, :]
        return q * y

    def _B_ref(x, w1, b1, w2, b2):
        y = _layernorm(x, axis=-1)
        h = _gelu(torch.einsum("bsd,df->bsf", y, w1) + b1)
        return torch.einsum("bsf,fd->bsd", h, w2) + b2

    x = A_q
    h = x + _A_ref(_layernorm(x, axis=-1), A_k, A_v, A_shift_k, A_ssm_k, A_ssm_D)
    h2 = h + _B_ref(_layernorm(h, axis=-1), B_w1, B_b1, B_w2, B_b2)
    return h2
```

```python
import re, copy

REG_RE = re.compile(r'(?<![\w.])([vas])(\d+)(?![\w])|(?<![\w.])([vas])\[(\d+):(\d+)\]|\b(vcc|exec|m0|scc)\b')

def regs_of(tok):
    out = []
    for m in REG_RE.finditer(tok):
        if m.group(1):
            out.append((m.group(1), int(m.group(2))))
        elif m.group(3):
            out += [(m.group(3), i) for i in range(int(m.group(4)), int(m.group(5)) + 1)]
        else:
            out.append((m.group(6), 0))
    return out

def v(i, n=1): return f"v{i}" if n == 1 else f"v[{i}:{i+n-1}]"
def a(i, n=1): return f"a{i}" if n == 1 else f"a[{i}:{i+n-1}]"
def s(i, n=1): return f"s{i}" if n == 1 else f"s[{i}:{i+n-1}]"

TRANS = ("v_exp_f32", "v_log_f32", "v_rcp_f32", "v_rsq_f32", "v_sqrt_f32", "v_sin_f32", "v_cos_f32", "v_rcp_iflag_f32")
PASSES = {"v_mfma_f32_16x16x32_bf16": 4, "v_mfma_f32_32x32x16_bf16": 8, "v_mfma_f32_16x16x4_f32": 8,
          "v_mfma_f32_32x32x2_f32": 16}
RMW = ("v_fmac_f32", "v_dot2c_f32_bf16", "v_pk_fmac_f16")

class Ins:
    __slots__ = ("op", "text", "rd", "wr", "kind", "srcc", "ab", "dpp", "states", "data")

def split_ops(rest):
    ops, depth, cur = [], 0, ""
    for ch in rest:
        if ch == '[': depth += 1
        if ch == ']': depth -= 1
        if ch == ',' and depth == 0:
            ops.append(cur.strip()); cur = ""
        else:
            cur += ch
    if cur.strip(): ops.append(cur.strip())
    return ops

def parse(text):
    t = text.split(';')[0].strip()
    sp = t.split(None, 1)
    op = sp[0]; rest = sp[1] if len(sp) > 1 else ""
    ops = split_ops(rest)
    i = Ins(); i.op = op; i.text = text; i.rd = set(); i.wr = set(); i.srcc = None; i.ab = set(); i.dpp = False
    i.states = 1; i.data = set()
    R = lambda k: set(regs_of(ops[k].split()[0] if False else ops[k])) if k < len(ops) else set()
    def Rfirst(k):
        if k >= len(ops): return set()
        return set(regs_of(ops[k].split(' ')[0]))
    base = op.replace("_e32", "").replace("_e64", "")
    if op == "s_nop":
        i.kind = "nop"; i.states = int(ops[0], 0) + 1
    elif op.startswith("v_mfma"):
        i.kind = "mfma"; i.wr = Rfirst(0); i.ab = Rfirst(1) | Rfirst(2); c = Rfirst(3)
        i.srcc = c; i.rd = i.ab | c
    elif op.startswith("v_"):
        i.kind = "valu"
        i.dpp = "_dpp" in op
        if base.startswith("v_swap") or base.startswith("v_permlane"):
            i.wr = Rfirst(0) | Rfirst(1); i.rd = set(i.wr)
        elif base.startswith(("v_add_co", "v_sub_co", "v_addc_co", "v_subb_co")):
            i.wr = Rfirst(0) | Rfirst(1)
            for k in range(2, len(ops)): i.rd |= Rfirst(k)
        else:
            i.wr = Rfirst(0)
            for k in range(1, len(ops)): i.rd |= Rfirst(k)
            if base in RMW or (i.dpp) or base.startswith("v_writelane"): i.rd |= Rfirst(0)
            if base.startswith("v_cndmask") and len(ops) == 3: i.rd.add(("vcc", 0))
    elif op.startswith(("buffer_load", "global_load")):
        lds = " lds" in (" " + t) or "_lds_" in op
        i.kind = "vmem_dma" if lds else "vmem_ld"
        if lds:
            for k in range(len(ops)): i.rd |= Rfirst(k)
            i.rd.add(("m0", 0))
        else:
            i.wr = Rfirst(0)
            for k in range(1, len(ops)): i.rd |= Rfirst(k)
            if "d16" in op: i.rd |= Rfirst(0)
    elif op.startswith(("buffer_store", "global_store", "buffer_atomic", "global_atomic")):
        i.kind = "vmem_st"
        for k in range(len(ops)): i.rd |= Rfirst(k)
        if op.endswith(("x3", "x4")):
            i.data = Rfirst(0) if op.startswith("buffer") else Rfirst(1)
    elif op.startswith(("ds_read", "ds_bpermute", "ds_permute", "ds_swizzle")):
        i.kind = "ds_ld"; i.wr = Rfirst(0)
        for k in range(1, len(ops)): i.rd |= Rfirst(k)
        if "d16" in op: i.rd |= Rfirst(0)
    elif op.startswith("ds_"):
        i.kind = "ds_st"
        for k in range(len(ops)): i.rd |= Rfirst(k)
    elif op.startswith(("s_load", "s_buffer_load", "s_memtime", "s_memrealtime")):
        i.kind = "smem"; i.wr = Rfirst(0)
        for k in range(1, len(ops)): i.rd |= Rfirst(k)
    elif op.startswith(("s_waitcnt", "s_barrier", "s_endpgm", "s_branch", "s_cbranch", "s_setprio", "s_sleep")):
        i.kind = "ctl"
    elif op.startswith(("s_cmp", "s_bitcmp")):
        i.kind = "salu"
        for k in range(len(ops)): i.rd |= Rfirst(k)
    elif op.startswith("s_"):
        i.kind = "salu"; i.wr = Rfirst(0)
        for k in range(1, len(ops)): i.rd |= Rfirst(k)
        if "saveexec" in op: i.wr.add(("exec", 0))
    else:
        raise ValueError("unknown instruction: " + text)
    return i

XDL_C = {2: 4, 4: 6, 8: 10, 16: 18}
XDL_R = {2: 5, 4: 8, 8: 12, 16: 20}
SG_C = {2: 2, 4: 4, 8: 8, 16: 16}
SG_R = {2: 4, 4: 6, 8: 10, 16: 18}
WAR_C = {2: 1, 4: 3, 8: 7, 16: 15}

def isv(r): return r[0] in "va"

def required(p, c):
    n = 0
    pv = {r for r in p.wr if isv(r)}
    ps = {r for r in p.wr if not isv(r)}
    if p.kind == "valu":
        isdot = p.op.startswith("v_dot")
        if c.kind == "mfma" and pv & c.rd: n = max(n, 3 if isdot else 2)
        if c.kind == "valu":
            if c.dpp and pv & c.rd: n = max(n, 2)
            if c.op.startswith("v_permlane") and pv & c.rd: n = max(n, 2)
            if c.op.startswith(("v_readlane", "v_readfirstlane")) and pv & c.rd: n = max(n, 1)
            if ps & c.rd: n = max(n, 4 if c.op.startswith(("v_readlane", "v_writelane")) else 2)
            if p.op.replace("_e32", "").replace("_e64", "") in TRANS and pv & c.rd: n = max(n, 1)
            if isdot and pv & (c.rd | c.wr):
                same = c.op == p.op
                ops = split_ops(c.text.split(';')[0].strip().split(None, 1)[1])
                ab = set(regs_of(ops[1].split(' ')[0])) | set(regs_of(ops[2].split(' ')[0]))
                if not (same and not (pv & ab)): n = max(n, 3)
        if c.kind.startswith("vmem") and ps & c.rd: n = max(n, 5)
        if c.kind in ("vmem_st", "ds_st", "vmem_ld", "ds_ld", "vmem_dma") and pv & c.rd:
            if p.op.replace("_e32", "").replace("_e64", "") in TRANS: n = max(n, 1)
            if isdot: n = max(n, 3)
        if c.kind == "salu" and ps & c.rd: n = max(n, 1)
        if ("exec", 0) in p.wr: n = max(n, 5)
    if p.kind == "mfma":
        ps_ = PASSES[p.op]; sg = p.op.endswith("_f32") and "bf16" not in p.op
        if c.kind == "mfma":
            if p.wr & c.ab: n = max(n, (SG_R if sg else XDL_R)[ps_])
            if p.wr & c.srcc:
                if c.srcc == p.wr and PASSES[c.op] == ps_ and c.op == p.op: n = max(n, 2 if ps_ == 2 else 0)
                else: n = max(n, (SG_C if sg else XDL_C)[ps_])
            elif p.wr & c.wr: n = max(n, (SG_C if sg else XDL_C)[ps_])
        elif c.kind in ("valu", "vmem_st", "vmem_ld", "ds_st", "ds_ld", "vmem_dma"):
            if p.wr & (c.rd | c.wr): n = max(n, (SG_R if sg else XDL_R)[ps_])
        if c.kind == "valu" and p.srcc & c.wr and not sg: n = max(n, WAR_C[ps_])
    if p.kind == "salu" and ("m0", 0) in p.wr and c.kind == "vmem_dma": n = max(n, 1)
    if p.kind == "vmem_st" and p.data & c.wr: n = max(n, 2 if c.kind in ("valu", "mfma") else 1)
    return n

class Asm:
    def __init__(self):
        self.lines = []
        self.reset()
        self.nops = 0
    def reset(self):
        self.vm = []
        self.lg = []
        self.win = []
        self.vmtot = 0
    def save(self): return (copy.copy(self.vm), copy.copy(self.lg), copy.copy(self.win), self.vmtot)
    def restore(self, st):
        self.vm, self.lg, self.win = (copy.copy(x) for x in st[:3]); self.vmtot = st[3]
    def mark(self): return self.vmtot
    def wait_mark(self, m, lg=None):
        n = self.vmtot - m
        if n < len(self.vm): self.wait(n, lg)
        elif lg is not None: self.wait(None, lg)
    def raw(self, text): self.lines.append(text)
    def label(self, name): self.lines.append(name + ":")
    def comment(self, c): self.lines.append("  ; " + c)
    def _push(self, ins):
        self.lines.append("  " + ins.text)
        self.win.append(ins)
        if len(self.win) > 24: self.win.pop(0)
    def wait(self, vm=None, lg=None):
        parts = []
        if vm is not None:
            vm = min(vm, 63); parts.append(f"vmcnt({vm})")
            if len(self.vm) > vm: self.vm = self.vm[len(self.vm) - vm:] if vm else []
        if lg is not None:
            lg = min(lg, 15); parts.append(f"lgkmcnt({lg})")
            if len(self.lg) > lg: self.lg = self.lg[len(self.lg) - lg:] if lg else []
        self._push(parse("s_waitcnt " + " ".join(parts)))
    def __call__(self, text):
        for t in text.split("\n"):
            t = t.strip()
            if t: self.emit(t)
    def emit(self, text):
        ins = parse(text)
        if ins.op == "s_waitcnt":
            m = re.search(r"vmcnt\((\d+)\)", text); n = re.search(r"lgkmcnt\((\d+)\)", text)
            self.wait(int(m.group(1)) if m else None, int(n.group(1)) if n else None); return
        touch = ins.rd | ins.wr
        nv = nl = None
        for k, d in enumerate(self.vm):
            if d & touch: nv = len(self.vm) - 1 - k
        anysm = any(sm for _, sm in self.lg)
        for k, (d, sm) in enumerate(self.lg):
            if d & touch: nl = 0 if anysm else len(self.lg) - 1 - k
        if nv is not None or nl is not None: self.wait(nv, nl)
        need, dist = 0, 0
        for p in reversed(self.win):
            need = max(need, required(p, ins) - dist)
            dist += p.states
            if dist > 20: break
        while need > 0:
            k = min(need, 16)
            self._push(parse(f"s_nop {k-1}")); self.nops += k; need -= k
        self._push(ins)
        if ins.kind in ("vmem_ld", "vmem_st", "vmem_dma"):
            self.vm.append(set(ins.wr)); self.vmtot += 1
            if len(self.vm) > 63: raise ValueError("more than 63 vmem ops outstanding at: " + text)
        elif ins.kind in ("ds_ld", "ds_st"):
            self.lg.append((set(ins.wr), False))
        elif ins.kind == "smem":
            self.lg.append((set(ins.wr), True))
    def text(self): return "\n".join(self.lines) + "\n"

def kernel_head(name):
    return f".globl {name}\n.p2align 8\n.type {name},@function\n{name}:\n"

def kernel_desc(name, vgpr, sgpr, accum=None):
    if accum is None: accum = (vgpr + 3) // 4 * 4
    return (f".p2align 6\n.amdhsa_kernel {name}\n  .amdhsa_next_free_vgpr {vgpr}\n  .amdhsa_next_free_sgpr {sgpr}\n"
            f"  .amdhsa_accum_offset {accum}\n  .amdhsa_group_segment_fixed_size 0\n  .amdhsa_kernarg_size 112\n"
            f"  .amdhsa_user_sgpr_count 2\n  .amdhsa_user_sgpr_kernarg_segment_ptr 1\n"
            f"  .amdhsa_system_sgpr_workgroup_id_x 1\n.end_amdhsa_kernel\n")
```

```python
from asmlib import *

NAME = "sequential_preLN__ssm_conv_h3__mixer_channel_mlp__prompt"
USTRIDE = 4096
U_OFF   = 0x000000
XP_OFF  = 0x300000
ST_OFF  = 0x500000
CS_OFF  = 0x510000
B1F_OFF = 0x512000
HP1_OFF = 0x600000
HP2_OFF = 0x800000
WS_SIZE = 0x1000000

KA = dict(q=0, k=8, v=16, sh=24, sk=32, D=40, w1=56, b1=64, w2=72, b2=80, out=88, dbg=96, ws=104)
SZ = dict(q=2097152, k=2097152, v=2097152, sh=4096, sk=2097152, D=1024, w1=1835008, b1=3584, w2=1835008,
          b2=1024, out=2097152, dbg=256, ws=WS_SIZE)

def load_srds(A, srds):
    for n, r in srds.items():
        A(f"s_load_dwordx2 {s(r,2)}, s[0:1], {KA[n]}")
    for n, r in srds.items():
        A(f"s_mov_b32 s{r+2}, {SZ[n]}")
        A(f"s_mov_b32 s{r+3}, 0x20000")

def rup(x, m): return (x + m - 1) // m * m

STAMP = False
STAMP_OFF = 0xF00000
NST = 6
def stamp0(A):
    if not STAMP: return
    A("s_memrealtime s[64:65]")
    A("s_memtime s[68:69]")
def stamp(A, i):
    if not STAMP: return
    A(f"s_memtime s[{68+2*i}:{69+2*i}]")
def stamp_end(A, kidx, ws, used, vt=250):
    if not STAMP: return
    A("s_mov_b64 exec, -1")
    A("s_waitcnt vmcnt(0)")
    A("s_memrealtime s[66:67]")
    A("s_memtime s[82:83]")
    A(f"v_lshrrev_b32 v{vt}, 6, v0")
    A(f"v_lshlrev_b32 v{vt}, 6, v{vt}")
    A("s_lshl_b32 s84, s2, 9")
    A(f"s_add_u32 s84, s84, {STAMP_OFF + kidx*131072}")
    A("s_waitcnt lgkmcnt(0)")
    A("s_mov_b64 exec, 1")
    regs = [64, 66, 68] + [68+2*i for i in used] + [82]
    slots = [0, 1, 2] + [2+i for i in used] + [2+NST]
    for r, sl in zip(regs, slots):
        A(f"v_mov_b32 v{vt+1}, s{r}")
        A(f"buffer_store_dword v{vt+1}, v{vt}, {ws}, s84 offen offset:{4*sl}")
def nsgpr(): return 96 if STAMP else 64

def stampw(A, i):
    if not STAMP: return
    stamp(A, i); A.wait(lg=0)
```

```python
import re, copy

REG_RE = re.compile(r'(?<![\w.])([vas])(\d+)(?![\w])|(?<![\w.])([vas])\[(\d+):(\d+)\]|\b(vcc|exec|m0|scc)\b')

def regs_of(tok):
    out = []
    for m in REG_RE.finditer(tok):
        if m.group(1):
            out.append((m.group(1), int(m.group(2))))
        elif m.group(3):
            out += [(m.group(3), i) for i in range(int(m.group(4)), int(m.group(5)) + 1)]
        else:
            out.append((m.group(6), 0))
    return out

def v(i, n=1): return f"v{i}" if n == 1 else f"v[{i}:{i+n-1}]"
def a(i, n=1): return f"a{i}" if n == 1 else f"a[{i}:{i+n-1}]"
def s(i, n=1): return f"s{i}" if n == 1 else f"s[{i}:{i+n-1}]"

TRANS = ("v_exp_f32", "v_log_f32", "v_rcp_f32", "v_rsq_f32", "v_sqrt_f32", "v_sin_f32", "v_cos_f32", "v_rcp_iflag_f32")
PASSES = {"v_mfma_f32_16x16x32_bf16": 4, "v_mfma_f32_32x32x16_bf16": 8, "v_mfma_f32_16x16x4_f32": 8,
          "v_mfma_f32_32x32x2_f32": 16}
RMW = ("v_fmac_f32", "v_dot2c_f32_bf16", "v_pk_fmac_f16")

class Ins:
    __slots__ = ("op", "text", "rd", "wr", "kind", "srcc", "ab", "dpp", "states", "data")

def split_ops(rest):
    ops, depth, cur = [], 0, ""
    for ch in rest:
        if ch == '[': depth += 1
        if ch == ']': depth -= 1
        if ch == ',' and depth == 0:
            ops.append(cur.strip()); cur = ""
        else:
            cur += ch
    if cur.strip(): ops.append(cur.strip())
    return ops

def parse(text):
    t = text.split(';')[0].strip()
    sp = t.split(None, 1)
    op = sp[0]; rest = sp[1] if len(sp) > 1 else ""
    ops = split_ops(rest)
    i = Ins(); i.op = op; i.text = text; i.rd = set(); i.wr = set(); i.srcc = None; i.ab = set(); i.dpp = False
    i.states = 1; i.data = set()
    R = lambda k: set(regs_of(ops[k].split()[0] if False else ops[k])) if k < len(ops) else set()
    def Rfirst(k):
        if k >= len(ops): return set()
        return set(regs_of(ops[k].split(' ')[0]))
    base = op.replace("_e32", "").replace("_e64", "")
    if op == "s_nop":
        i.kind = "nop"; i.states = int(ops[0], 0) + 1
    elif op.startswith("v_mfma"):
        i.kind = "mfma"; i.wr = Rfirst(0); i.ab = Rfirst(1) | Rfirst(2); c = Rfirst(3)
        i.srcc = c; i.rd = i.ab | c
    elif op.startswith("v_"):
        i.kind = "valu"
        i.dpp = "_dpp" in op
        if base.startswith("v_swap") or base.startswith("v_permlane"):
            i.wr = Rfirst(0) | Rfirst(1); i.rd = set(i.wr)
        elif base.startswith(("v_add_co", "v_sub_co", "v_addc_co", "v_subb_co")):
            i.wr = Rfirst(0) | Rfirst(1)
            for k in range(2, len(ops)): i.rd |= Rfirst(k)
        else:
            i.wr = Rfirst(0)
            for k in range(1, len(ops)): i.rd |= Rfirst(k)
            if base in RMW or (i.dpp) or base.startswith("v_writelane"): i.rd |= Rfirst(0)
            if base.startswith("v_cndmask") and len(ops) == 3: i.rd.add(("vcc", 0))
    elif op.startswith(("buffer_load", "global_load")):
        lds = " lds" in (" " + t) or "_lds_" in op
        i.kind = "vmem_dma" if lds else "vmem_ld"
        if lds:
            for k in range(len(ops)): i.rd |= Rfirst(k)
            i.rd.add(("m0", 0))
        else:
            i.wr = Rfirst(0)
            for k in range(1, len(ops)): i.rd |= Rfirst(k)
            if "d16" in op: i.rd |= Rfirst(0)
    elif op.startswith(("buffer_store", "global_store", "buffer_atomic", "global_atomic")):
        i.kind = "vmem_st"
        for k in range(len(ops)): i.rd |= Rfirst(k)
        if op.endswith(("x3", "x4")):
            i.data = Rfirst(0) if op.startswith("buffer") else Rfirst(1)
    elif op.startswith(("ds_read", "ds_bpermute", "ds_permute", "ds_swizzle")):
        i.kind = "ds_ld"; i.wr = Rfirst(0)
        for k in range(1, len(ops)): i.rd |= Rfirst(k)
        if "d16" in op: i.rd |= Rfirst(0)
    elif op.startswith("ds_"):
        i.kind = "ds_st"
        for k in range(len(ops)): i.rd |= Rfirst(k)
    elif op.startswith(("s_load", "s_buffer_load", "s_memtime", "s_memrealtime")):
        i.kind = "smem"; i.wr = Rfirst(0)
        for k in range(1, len(ops)): i.rd |= Rfirst(k)
    elif op.startswith(("s_waitcnt", "s_barrier", "s_endpgm", "s_branch", "s_cbranch", "s_setprio", "s_sleep")):
        i.kind = "ctl"
    elif op.startswith(("s_cmp", "s_bitcmp")):
        i.kind = "salu"
        for k in range(len(ops)): i.rd |= Rfirst(k)
    elif op.startswith("s_"):
        i.kind = "salu"; i.wr = Rfirst(0)
        for k in range(1, len(ops)): i.rd |= Rfirst(k)
        if "saveexec" in op: i.wr.add(("exec", 0))
    else:
        raise ValueError("unknown instruction: " + text)
    return i

XDL_C = {2: 4, 4: 6, 8: 10, 16: 18}
XDL_R = {2: 5, 4: 8, 8: 12, 16: 20}
SG_C = {2: 2, 4: 4, 8: 8, 16: 16}
SG_R = {2: 4, 4: 6, 8: 10, 16: 18}
WAR_C = {2: 1, 4: 3, 8: 7, 16: 15}

def isv(r): return r[0] in "va"

def required(p, c):
    n = 0
    pv = {r for r in p.wr if isv(r)}
    ps = {r for r in p.wr if not isv(r)}
    if p.kind == "valu":
        isdot = p.op.startswith("v_dot")
        if c.kind == "mfma" and pv & c.rd: n = max(n, 3 if isdot else 2)
        if c.kind == "valu":
            if c.dpp and pv & c.rd: n = max(n, 2)
            if c.op.startswith("v_permlane") and pv & c.rd: n = max(n, 2)
            if c.op.startswith(("v_readlane", "v_readfirstlane")) and pv & c.rd: n = max(n, 1)
            if ps & c.rd: n = max(n, 4 if c.op.startswith(("v_readlane", "v_writelane")) else 2)
            if p.op.replace("_e32", "").replace("_e64", "") in TRANS and pv & c.rd: n = max(n, 1)
            if isdot and pv & (c.rd | c.wr):
                same = c.op == p.op
                ops = split_ops(c.text.split(';')[0].strip().split(None, 1)[1])
                ab = set(regs_of(ops[1].split(' ')[0])) | set(regs_of(ops[2].split(' ')[0]))
                if not (same and not (pv & ab)): n = max(n, 3)
        if c.kind.startswith("vmem") and ps & c.rd: n = max(n, 5)
        if c.kind in ("vmem_st", "ds_st", "vmem_ld", "ds_ld", "vmem_dma") and pv & c.rd:
            if p.op.replace("_e32", "").replace("_e64", "") in TRANS: n = max(n, 1)
            if isdot: n = max(n, 3)
        if c.kind == "salu" and ps & c.rd: n = max(n, 1)
        if ("exec", 0) in p.wr: n = max(n, 5)
    if p.kind == "mfma":
        ps_ = PASSES[p.op]; sg = p.op.endswith("_f32") and "bf16" not in p.op
        if c.kind == "mfma":
            if p.wr & c.ab: n = max(n, (SG_R if sg else XDL_R)[ps_])
            if p.wr & c.srcc:
                if c.srcc == p.wr and PASSES[c.op] == ps_ and c.op == p.op: n = max(n, 2 if ps_ == 2 else 0)
                else: n = max(n, (SG_C if sg else XDL_C)[ps_])
            elif p.wr & c.wr: n = max(n, (SG_C if sg else XDL_C)[ps_])
        elif c.kind in ("valu", "vmem_st", "vmem_ld", "ds_st", "ds_ld", "vmem_dma"):
            if p.wr & (c.rd | c.wr): n = max(n, (SG_R if sg else XDL_R)[ps_])
        if c.kind == "valu" and p.srcc & c.wr and not sg: n = max(n, WAR_C[ps_])
    if p.kind == "salu" and ("m0", 0) in p.wr and c.kind == "vmem_dma": n = max(n, 1)
    if p.kind == "vmem_st" and p.data & c.wr: n = max(n, 2 if c.kind in ("valu", "mfma") else 1)
    return n

class Asm:
    def __init__(self):
        self.lines = []
        self.reset()
        self.nops = 0
    def reset(self):
        self.vm = []
        self.lg = []
        self.win = []
        self.vmtot = 0
    def save(self): return (copy.copy(self.vm), copy.copy(self.lg), copy.copy(self.win), self.vmtot)
    def restore(self, st):
        self.vm, self.lg, self.win = (copy.copy(x) for x in st[:3]); self.vmtot = st[3]
    def merge(self, states):
        def mg(lists, un):
            L = max(len(l) for l in lists); out = [None] * L
            for l in lists:
                for k, d in enumerate(l):
                    p = L - (len(l) - k)
                    out[p] = d if out[p] is None else un(out[p], d)
            return out
        self.vm = mg([st[0] for st in states], lambda x, y: x | y)
        self.lg = mg([st[1] for st in states], lambda x, y: (x[0] | y[0], x[1] or y[1]))
        self.win = copy.copy(states[-1][2]); self.vmtot = max(st[3] for st in states)
    def mark(self): return self.vmtot
    def wait_mark(self, m, lg=None):
        n = self.vmtot - m
        if n < len(self.vm): self.wait(n, lg)
        elif lg is not None: self.wait(None, lg)
    def raw(self, text): self.lines.append(text)
    def label(self, name): self.lines.append(name + ":")
    def comment(self, c): self.lines.append("  ; " + c)
    def _push(self, ins):
        self.lines.append("  " + ins.text)
        self.win.append(ins)
        if len(self.win) > 24: self.win.pop(0)
    def wait(self, vm=None, lg=None):
        parts = []
        if vm is not None:
            vm = min(vm, 63); parts.append(f"vmcnt({vm})")
            if len(self.vm) > vm: self.vm = self.vm[len(self.vm) - vm:] if vm else []
        if lg is not None:
            lg = min(lg, 15); parts.append(f"lgkmcnt({lg})")
            if len(self.lg) > lg: self.lg = self.lg[len(self.lg) - lg:] if lg else []
        self._push(parse("s_waitcnt " + " ".join(parts)))
    def __call__(self, text):
        for t in text.split("\n"):
            t = t.strip()
            if t: self.emit(t)
    def emit(self, text):
        ins = parse(text)
        if ins.op == "s_waitcnt":
            m = re.search(r"vmcnt\((\d+)\)", text); n = re.search(r"lgkmcnt\((\d+)\)", text)
            self.wait(int(m.group(1)) if m else None, int(n.group(1)) if n else None); return
        touch = ins.rd | ins.wr
        nv = nl = None
        for k, d in enumerate(self.vm):
            if d & touch: nv = len(self.vm) - 1 - k
        anysm = any(sm for _, sm in self.lg)
        for k, (d, sm) in enumerate(self.lg):
            if d & touch: nl = 0 if anysm else len(self.lg) - 1 - k
        if nv is not None or nl is not None: self.wait(nv, nl)
        need, dist = 0, 0
        for p in reversed(self.win):
            need = max(need, required(p, ins) - dist)
            dist += p.states
            if dist > 20: break
        while need > 0:
            k = min(need, 16)
            self._push(parse(f"s_nop {k-1}")); self.nops += k; need -= k
        self._push(ins)
        if ins.kind in ("vmem_ld", "vmem_st", "vmem_dma"):
            self.vm.append(set(ins.wr)); self.vmtot += 1
            if len(self.vm) > 63: raise ValueError("more than 63 vmem ops outstanding at: " + text)
        elif ins.kind in ("ds_ld", "ds_st"):
            self.lg.append((set(ins.wr), False))
        elif ins.kind == "smem":
            self.lg.append((set(ins.wr), True))
    def text(self): return "\n".join(self.lines) + "\n"

def kernel_head(name):
    return f".globl {name}\n.p2align 8\n.type {name},@function\n{name}:\n"

def kernel_desc(name, vgpr, sgpr, accum=None):
    if accum is None: accum = (vgpr + 3) // 4 * 4
    return (f".p2align 6\n.amdhsa_kernel {name}\n  .amdhsa_next_free_vgpr {vgpr}\n  .amdhsa_next_free_sgpr {sgpr}\n"
            f"  .amdhsa_accum_offset {accum}\n  .amdhsa_group_segment_fixed_size 0\n  .amdhsa_kernarg_size 112\n"
            f"  .amdhsa_user_sgpr_count 2\n  .amdhsa_user_sgpr_kernarg_segment_ptr 1\n"
            f"  .amdhsa_system_sgpr_workgroup_id_x 1\n.end_amdhsa_kernel\n")
```

```python
from asmlib import *
import struct
def f2u(x): return struct.unpack("<I", struct.pack("<f", x))[0]

NAME = "sequential_preLN__ssm_conv_h3__mixer_channel_mlp__prompt"
U_OFF  = 0x000000
XP_OFF = 0x200000
HP_OFF = 0x400000
FL_OFF = 0x600000
ST_OFF = 0x604000
H2_OFF = 0x800000
WS_SIZE = 0x1000000
STAMP_OFF = 0xF00000

KA = dict(q=0, k=8, v=16, sh=24, sk=32, D=40, w1=56, b1=64, w2=72, b2=80, out=88, dbg=96, ws=104)
SZ = dict(q=2097152, k=2097152, v=2097152, sh=4096, sk=2097152, D=1024, w1=1835008, b1=3584, w2=1835008,
          b2=1024, out=2097152, dbg=256, ws=WS_SIZE)

L_W1 = 0
L_CV = 114688
RS = 4352
L_YB = L_CV + 8 * RS
L_AUG = L_YB + 8192
L_ZB = L_AUG + 2048
L_STX = L_ZB + 2048
L_SHUF = 81920
LDS_BYTES = 163840

STAMP = False
NSTAMP = 14
SB = 70
STAMPS = None
USED = []
def stamp(A, i, wait=False):
    if not STAMP: return
    if STAMPS is not None and i != 0:
        if i not in STAMPS: return
        i = STAMPS.index(i) + 1
    A(f"s_memtime s[{SB+2*i}:{SB+2*i+1}]")
    if wait: A.wait(lg=0)
```

```python
import sys
from collections import deque
import common
common.STAMP = "stamp" in sys.argv
from common import *

C0 = -2.0 * 0.7978845608028654 * 1.4426950408889634
C1 = C0 * 0.044715
SR = dict(k=8, v=12, q=16, ws=20, sk=24, sh=28, w1=32, w2=36, b1=40, b2=44, out=48, dbg=52)
K_, V_, Q_, WS, SK, SH, W1, W2, B1, B2, OUT, DBG = (s(SR[n], 4) for n in ("k", "v", "q", "ws", "sk", "sh", "w1", "w2", "b1", "b2", "out", "dbg"))
POLL_MAX = 4000
DP = "row_mask:0xf bank_mask:0xf"
VLANE, VL16, VQ = 1, 2, 3
OPT = dict(n_early=1, n_post=4, n_wait=8, win=3, n_conv=27, cv_gap=5, cv_start=8, n_b1=4, n_b2=8, j2a=2, j2n=4, pre=6,
           g1_gap=4, lgd=5)
LV = [0, 1, 3, 2]
KSORD = [ks for a_ in LV for ks in (range(4*a_, 4*a_+4) if a_ < 3 else (12, 13))]

def cost(t):
    op = t.split()[0]
    if op.startswith("v_mfma"): return 8
    if op in TRANS or op.startswith(("v_swap", "v_permlane")): return 8
    return 4

class Sched:
    def __init__(self, A):
        self.A = A; self.q = deque(); self.n = 0; self.debt = 0
    def add(self, text, delay=0):
        self.q.append((self.n + delay, text))
    def side(self, text):
        self.A(text); self.debt += cost(text)
    def mfma(self, text, room=8):
        self.A(text); self.n += 1
        b = room - self.debt; self.debt = 0
        while self.q and self.q[0][0] <= self.n:
            t = self.q[0][1]
            if callable(t):
                self.q.popleft(); b -= t(); continue
            c = cost(t)
            if c > b and not (b >= 4 and c == 8): break
            self.q.popleft(); self.A(t); b -= c
        if b < 0: self.debt = -b
    def flush(self):
        while self.q:
            t = self.q.popleft()[1]
            if callable(t): t()
            else: self.A(t)

def poll(A, name, loads, need, cnt="s69"):
    A(f"s_mov_b32 {cnt}, 0")
    A.label(name)
    for d, ad, srd, so, off in loads:
        A(f"buffer_load_dword v{d}, v{ad}, {srd}, {so} offen offset:{off} sc1")
    A(f"s_add_u32 {cnt}, {cnt}, 1")
    A.wait(vm=0)
    d0 = loads[0][0]
    for d, *_ in loads[1:]: A(f"v_min_u32 v{d0}, v{d0}, v{d}")
    A(f"v_cmp_gt_u32 vcc, {need}, v{d0}")
    A(f"s_cmp_ge_u32 {cnt}, {POLL_MAX}")
    A(f"s_cbranch_scc1 {name}_out")
    A("s_nop 3")
    A(f"s_cbranch_vccnz {name}")
    A.label(name + "_out")

def rbf(A, d, src):
    A(f"v_cvt_pk_bf16_f32 v{d}, v{src}, v{src}")
    A(f"v_lshlrev_b32 v{d}, 16, v{d}")

VW, VWC, VW1 = 8, 9, 15
class Bulk:
    def __init__(self): self.n = 0; self.g0 = None
    def save(self): return (self.n, self.g0)
    def restore(self, st): self.n, self.g0 = st
    def left(self): return 88 - self.n
    def m0_lost(self): self.g0 = None if self.g0 is None else ("lost", self.g0 if not isinstance(self.g0, tuple) else self.g0[1])
    def next(self):
        n = self.n; self.n += 1
        if n == 0:
            return ["s_mov_b32 exec_hi, 0x00ffffff", "s_mov_b32 m0, s61", f"buffer_load_dwordx4 v{VW1}, {W1}, s60 offen lds", "s_mov_b32 exec_hi, -1"]
        if n < 32:
            i = n - 1 if n < 16 else n - 16
            so, lb = (28, 29) if n < 16 else (30, 31)
            ops = []
            if i == 0:
                self.g0 = 0; ops.append(f"s_mov_b32 m0, s{lb}"); ops.append("s_nop 0")
            else:
                lost = isinstance(self.g0, tuple); g0 = self.g0[1] if lost else self.g0
                if lost or i - g0 == 5:
                    ops.append(f"s_add_u32 m0, s{lb}, {896*i}"); ops.append(f"s_add_u32 s{so}, s{so}, {14336 + 896*(i-1-g0)}"); self.g0 = i
                else: ops.append(f"s_add_u32 s{so}, s{so}, 13440")
            ops.append(f"buffer_load_dwordx4 v{VW1}, {W1}, s{so} offen offset:{896*(i-self.g0)} lds")
            return ops
        n -= 32; ks = KSORD[n // 4]; q = n % 4
        ops = []
        if q == 0:
            if ks < 12: ops.append(f"s_add_u32 s57, s{24+ks%4}, {(ks//4)*32768}")
            else: ops.append(f"s_min_u32 s57, s{24+2*(ks-12)}, s{25+2*(ks-12)}")
        ops.append(f"buffer_load_dwordx4 {a(16*ks+4*q,4)}, v{VW if ks < 12 else VWC}, {W2}, s57 offen offset:{1024*q}")
        return ops
    def emit(self, A, cnt, win=None):
        for _ in range(min(cnt, self.left())):
            if win is not None and len(A.vm) > win: A.wait(vm=win)
            for o in self.next(): A(o)
BK = Bulk()

def phase_p(A):
    for n in ("k", "sh", "v", "ws", "q", "sk", "w1", "dbg", "w2", "b1", "b2", "out"):
        A(f"s_load_dwordx2 {s(SR[n],2)}, s[0:1], {KA[n]}")
    A(f"s_load_dwordx2 s[56:57], s[0:1], {KA['D']}")
    A("v_lshrrev_b32 v4, 6, v0")
    A(f"v_and_b32 v{VLANE}, 63, v0")
    A("v_readfirstlane_b32 s3, v4")
    for n, r in SR.items():
        A(f"s_mov_b32 s{r+2}, {SZ[n]}")
        A(f"s_mov_b32 s{r+3}, 0x20000")
    A("s_and_b32 s4, s2, 7")
    A("s_lshr_b32 s5, s2, 3")
    A("s_lshr_b32 s6, s3, 1")
    A("s_and_b32 s7, s3, 1")
    A("v_and_b32 v4, 7, v1")
    A("v_lshrrev_b32 v5, 3, v1")
    A("s_lshl_b32 s60, s5, 16"); A("s_lshl_b32 s61, s6, 15"); A("s_add_u32 s60, s60, s61")
    A("s_lshl_b32 s61, s4, 7"); A("s_add_u32 s60, s60, s61")
    A("s_lshl_b32 s61, s7, 6"); A("s_add_u32 s60, s60, s61")
    A("v_lshlrev_b32 v6, 12, v5")
    A("v_lshl_add_u32 v6, v4, 3, v6")
    A("v_add_u32 v6, s60, v6")
    A("v_subrev_u32 v7, 0xc00, v6")
    A("s_lshl_b32 s60, s4, 9"); A("s_lshl_b32 s61, s7, 8"); A("s_add_u32 s60, s60, s61")
    A("v_lshlrev_b32 v8, 5, v4")
    A("v_add_u32 v8, s60, v8")
    A("s_lshl_b32 s60, s5, 6"); A("s_lshl_b32 s61, s4, 3"); A("s_add_u32 s62, s60, s61")
    A("v_lshrrev_b32 v9, 5, v0")
    A("v_add_u32 v9, s62, v9")
    A("v_and_b32 v10, 31, v0")
    A("v_lshlrev_b32 v9, 10, v9")
    A("v_lshl_add_u32 v9, v10, 4, v9")
    A(f"v_lshlrev_b32 v{VL16}, 4, v1")
    for r in range(4): A(f"v_mov_b32 v{66+r}, 0")
    A("s_lshl_b32 s58, s4, 4"); A("s_lshr_b32 s61, s5, 1"); A("s_add_u32 s58, s58, s61")
    A("s_lshl_b32 s69, s58, 2"); A("s_add_u32 s69, s69, s3")
    A("s_lshl_b32 s63, s69, 1"); A("s_and_b32 s63, s63, 0xfffc")
    A("s_lshl_b32 s69, s69, 12")
    A(f"s_mul_i32 s68, s3, {RS}"); A(f"s_add_u32 s68, s68, {L_CV}")
    KR, SHR, VR, QR, QS, PF = 16, 30, 38, 46, 54, 62
    A.wait(lg=0)
    stamp(A, "karg")
    A("s_lshl_b32 s60, s3, 3"); A("s_or_b32 s60, s60, s5")
    A("s_cmp_lg_u32 s60, 0")
    A("s_cbranch_scc1 p_nozero")
    A("s_lshl_b32 s61, s2, 12"); A(f"s_add_u32 s61, s61, {FL_OFF}")
    for i in range(4): A(f"buffer_store_dwordx4 v[66:69], v{VL16}, {WS}, s61 offen offset:{1024*i} sc1")
    A.label("p_nozero")
    A.vm = []
    for r in range(3): A(f"buffer_load_dwordx2 {v(KR+2*r,2)}, v7, {K_}, 0 offen offset:{1024*r}")
    for r in range(4): A(f"buffer_load_dwordx2 {v(KR+6+2*r,2)}, v6, {K_}, 0 offen offset:{1024*r}")
    for r in range(2): A(f"buffer_load_dwordx4 {v(SHR+4*r,4)}, v8, {SH}, 0 offen offset:{16*r}")
    for r in range(4): A(f"buffer_load_dwordx2 {v(VR+2*r,2)}, v6, {V_}, 0 offen offset:{1024*r}")
    for r in range(4): A(f"buffer_load_dwordx2 {v(QR+2*r,2)}, v6, {Q_}, 0 offen offset:{1024*r}")
    A("s_load_dword s59, s[56:57], s63")
    A("s_getpc_b64 s[64:65]")
    A.label("p_pc")
    A("s_sub_u32 s64, s64, p_pc-code_lo")
    A("s_subb_u32 s65, s65, 0")
    A("s_mov_b32 s66, code_end-code_lo")
    A("s_mov_b32 s67, 0x20000")
    A("s_lshl_b32 s61, s5, 2"); A("s_add_u32 s61, s61, s3"); A("s_lshl_b32 s61, s61, 10")
    A(f"v_add_u32 v10, s61, v{VL16}")
    A(f"buffer_load_dwordx4 {v(PF,4)}, v10, s[64:67], 0 offen")
    for r in range(2): A(f"buffer_load_dwordx4 {v(QS+4*r,4)}, v9, {Q_}, 0 offen offset:{512*r}")
    A(f"s_add_u32 m0, s68, {4*RS + 256}")
    A("s_nop 0")
    for i in range(4): A(f"buffer_load_dwordx4 v{VL16}, {SK}, s69 offen offset:{1024*i} lds")
    A(f"v_mul_u32_u24 v{VW1}, 0x1249, v1"); A(f"v_add_u32 v{VW1}, 0x1249, v{VW1}"); A(f"v_lshrrev_b32 v{VW1}, 16, v{VW1}")
    A(f"v_mul_u32_u24 v{VW1}, 3360, v{VW1}"); A(f"v_add_u32 v{VW1}, v{VW1}, v{VL16}")
    A("s_and_b32 s61, s5, 15"); A("s_mul_i32 s60, s61, 224")
    A(f"s_mul_i32 s61, s3, {32*14336}"); A("s_add_u32 s60, s60, s61")
    A(f"s_mul_i32 s61, s3, {32*896}")
    A("s_cmp_ge_u32 s5, 16")
    A(f"s_cselect_b32 s28, {16*14336}, 0"); A(f"s_cselect_b32 s29, {16*896}, 0")
    A(f"s_cselect_b32 s30, 0, {15*14336}"); A(f"s_cselect_b32 s31, 0, {15*896}")
    A("s_add_u32 s28, s28, s60"); A("s_add_u32 s29, s29, s61"); A("s_add_u32 s30, s30, s60"); A("s_add_u32 s31, s31, s61")
    A(f"s_add_u32 s60, s60, {31*14336}"); A(f"s_add_u32 s61, s61, {31*896}")
    assert OPT["n_early"] >= 1
    BK.emit(A, OPT["n_early"])
    A("v_lshrrev_b32 v10, 4, v1"); A("v_and_b32 v11, 15, v1")
    A(f"v_lshlrev_b32 v{VQ}, 14, v10"); A(f"v_lshl_add_u32 v{VQ}, v11, 4, v{VQ}")
    A("v_mul_u32_u24 v12, 272, v10"); A("v_lshl_add_u32 v12, v11, 4, v12"); A("v_add_u32 v12, s68, v12")
    A("v_mul_u32_u24 v13, 272, v4"); A("v_add_u32 v13, s68, v13")
    A("v_lshl_add_u32 v14, v5, 5, v13")
    A("v_lshl_add_u32 v13, v5, 3, v13")
    A("v_and_b32 v10, 1, v10"); A(f"v_mul_u32_u24 v10, {4*RS}, v10"); A("v_lshl_add_u32 v10, v11, 4, v10"); A("v_add_u32 v158, s68, v10")
    A("v_lshlrev_b32 v10, 3, v0"); A(f"v_add_u32 v10, {L_ZB}, v10")
    A("ds_write_b64 v10, v[66:67]")
    A("v_lshrrev_b32 v10, 2, v1"); A("v_and_b32 v11, 3, v1"); A("v_lshlrev_b32 v10, 12, v10"); A("v_lshl_add_u32 v10, v11, 4, v10")
    A("s_lshl_b32 s63, s5, 1"); A("s_add_u32 s63, s63, s6")
    A("s_lshl_b32 s64, s4, 1"); A("s_add_u32 s64, s64, s7"); A("s_lshl_b32 s64, s64, 17")
    A("s_lshl_b32 s65, s63, 6"); A("s_add_u32 s65, s65, s64")
    if U_OFF: A(f"s_add_u32 s65, s65, {U_OFF}")
    A("s_add_u32 s66, s65, 65536")
    A("s_lshl_b32 s63, s63, 8"); A("s_add_u32 s63, s63, s64"); A(f"s_add_u32 s63, s63, {XP_OFF}")
    A("s_add_u32 s64, s63, 65536")
    A("s_mov_b32 s6, 0xffff0000")
    A("s_mov_b32 s7, 0x3f803f80")
    A("v_and_b32 v11, 7, v1"); A("v_lshlrev_b32 v11, 2, v11")
    KF, TF, VF, ACC, O = 70, 98, 114, 130, 146
    def unpack(lo, hi, src):
        A(f"v_lshlrev_b32 v{lo}, 16, v{src}"); A(f"v_and_b32 v{hi}, s6, v{src}")
    for r in range(7):
        for h in range(2): unpack(KF+4*r+2*h, KF+4*r+2*h+1, KR+2*r+h)
    stamp(A, "k")
    A("s_lshl_b32 s67, s3, 3"); A("s_or_b32 s67, s67, s5"); A("s_cmp_lg_u32 s67, 0")
    A("s_cbranch_scc1 p_nosig")
    st = A.save()
    A("v_mov_b32 v17, 1"); A("s_lshl_b32 s67, s2, 2"); A("s_mov_b64 exec, 1")
    A(f"buffer_store_dword v17, v67, {DBG}, s67 offen sc1")
    A("s_mov_b64 exec, -1")
    A.label("p_nosig")
    A.restore(st)
    for c in range(4):
        for h in range(2): unpack(TF+4*(2*h)+c, TF+4*(2*h+1)+c, SHR+2*c+h)
    for jj in range(4):
        for i in range(4):
            for h in range(2):
                d = v(ACC+4*i+2*h, 2); kf = v(KF+4*(i+3-jj)+2*h, 2); tf = v(TF+4*jj+2*h, 2)
                if jj == 0: A(f"v_pk_mul_f32 {d}, {kf}, {tf}")
                else: A(f"v_pk_fma_f32 {d}, {kf}, {tf}, {d}")
    for i in range(4):
        for h in range(2): unpack(VF+4*i+2*h, VF+4*i+2*h+1, VR+2*i+h)
    for i in range(4):
        for h in range(2):
            d = v(ACC+4*i+2*h, 2)
            A(f"v_pk_mul_f32 {d}, {d}, {v(VF+4*i+2*h,2)}")
    for c in range(4):
        A(f"v_cvt_pk_bf16_f32 v{O+2*c}, v{ACC+c}, v{ACC+4+c}")
        A(f"v_cvt_pk_bf16_f32 v{O+2*c+1}, v{ACC+8+c}, v{ACC+12+c}")
        A(f"ds_write_b64 v13, {v(O+2*c,2)} offset:{64*c}")
    for i in range(2): A(f"ds_read_b128 {v(KF+4*i,4)}, v12 offset:{1088*i}")
    for i in range(2): A(f"ds_write_b128 v14, {v(QR+4*i,4)} offset:{2176+16*i}")
    for i in range(2): A(f"ds_read_b128 {v(KF+8+4*i,4)}, v12 offset:{2176+1088*i}")
    A("ds_write_b128 v158, v[66:69]")
    for i in range(2): A(f"buffer_store_dwordx4 {v(KF+4*i,4)}, v10, {WS}, s{65+i} offen sc1")
    for i in range(2): A(f"buffer_store_dwordx4 {v(KF+8+4*i,4)}, v{VQ}, {WS}, s{63+i} offen sc1")
    A(f"buffer_load_dword v16, v11, {DBG}, 0 offen sc1")
    mk = A.mark()
    stamp(A, "ust")
    BK.emit(A, OPT["n_post"])
    S1, S2, T = 154, 155, 156
    A(f"v_dot2_f32_bf16 v{S1}, v{QS}, s7, 0")
    A(f"v_dot2_f32_bf16 v{S2}, v{QS}, v{QS}, 0")
    for r in range(1, 8):
        A(f"v_dot2_f32_bf16 v{S1}, v{QS+r}, s7, v{S1}")
        A(f"v_dot2_f32_bf16 v{S2}, v{QS+r}, v{QS+r}, v{S2}")
    for ctl in ("quad_perm:[1,0,3,2] row_mask:0xf", "quad_perm:[2,3,0,1] row_mask:0xf", "row_half_mirror row_mask:0xf",
                "row_mirror row_mask:0xf", "row_bcast:15 row_mask:0xa"):
        for r in (S1, S2): A(f"v_add_f32_dpp v{r}, v{r}, v{r} {ctl} bank_mask:0xf")
    A(f"v_mul_f32 v{S1}, 0x3b000000, v{S1}")
    A(f"v_mul_f32 v{S2}, 0x3b000000, v{S2}")
    A(f"v_fma_f32 v{S2}, -v{S1}, v{S1}, v{S2}")
    rbf(A, S1, S1); rbf(A, S2, S2)
    A(f"v_add_f32 v{S2}, 0x3727c5ac, v{S2}")
    rbf(A, S2, S2)
    A(f"v_sqrt_f32 v{S2}, v{S2}")
    rbf(A, S2, S2)
    A(f"v_rcp_f32 v{T}, v{S2}")
    A("v_lshrrev_b32 v12, 5, v0"); A("v_lshlrev_b32 v12, 3, v12"); A(f"v_add_u32 v12, {L_STX}, v12")
    A(f"v_mul_f32 v{T+1}, v{S1}, v{T}")
    A(f"v_sub_f32 v{T+1}, 0, v{T+1}")
    A("s_mov_b32 exec_lo, 0x80000000"); A("s_mov_b32 exec_hi, 0x80000000")
    A(f"ds_write_b64 v12, {v(T,2)}")
    A("s_mov_b64 exec, -1")
    conv_setup(A)
    w2_setup(A)
    A("v_lshlrev_b32 v12, 3, v1"); A(f"v_add_u32 v13, {L_STX}, v12")
    A("v_mov_b32 v20, 1"); A("v_mov_b32 v17, 0")
    A("s_lshl_b32 s63, s2, 6"); A(f"s_add_u32 s63, s63, {FL_OFF}")
    A("s_lshl_b32 s64, s62, 3"); A(f"s_add_u32 s64, s64, {ST_OFF}")
    A.wait_mark(mk, lg=0)
    A("v_cmp_eq_u32 vcc, 0, v16")
    stamp(A, "udr")
    A("s_barrier")
    A("ds_read_b64 v[18:19], v13")
    A("s_nop 1")
    A("s_cbranch_vccz p_initok")
    st2 = A.save()
    poll(A, "p_pinit", [(16, 11, DBG, 0, 0)], 1, cnt="s65")
    A.label("p_initok")
    A.restore(st2)
    A("s_cmp_lg_u32 s3, 0")
    A("s_cbranch_scc1 p_nf")
    st = A.save()
    A("s_mov_b64 exec, 1")
    A(f"buffer_store_dword v20, v17, {WS}, s63 offen sc1")
    A("s_mov_b64 exec, 0xff")
    A(f"buffer_store_dwordx2 v[18:19], v12, {WS}, s64 offen sc1")
    A("s_mov_b64 exec, -1")
    A.label("p_nf")
    A.restore(st)
    conv_bfrags(A)
    A("v_and_b32 v12, 31, v1"); A("v_lshlrev_b32 v12, 9, v12")
    A("s_lshl_b32 s64, s4, 6"); A(f"s_add_u32 s64, s64, {FL_OFF}")
    BK.emit(A, OPT["n_wait"], OPT["win"])
    stamp(A, "aw")
    poll(A, "p_pa", [(16, 12, WS, "s64", 0)], 1, cnt="s65")
    stamp(A, "apoll")
    A("s_add_u32 m0, s68, 256")
    if U_OFF: A(f"s_add_u32 s69, s69, {U_OFF}")
    else: A("s_nop 0")
    for i in range(4): A(f"buffer_load_dwordx4 v{VL16}, {WS}, s69 offen offset:{1024*i} sc1 lds")
    BK.m0_lost()
    return A.mark()

VA, VB, VY, VU = 4, 5, 6, 7
BF, AFR = 192, 64
def bfr(jb, o=0, n=4): return (v if jb < 8 else a)(BF + 4*jb + o, n)
def conv_setup(A):
    A("v_and_b32 v8, 3, v1"); A("v_bfe_u32 v9, v1, 2, 2"); A("v_lshrrev_b32 v10, 4, v1"); A("v_lshlrev_b32 v10, 6, v10")
    A(f"v_lshlrev_b32 v{VA}, 5, v8"); A(f"v_lshl_add_u32 v{VA}, v9, 3, v{VA}"); A(f"v_sub_u32 v{VA}, v{VA}, v10")
    A("s_add_u32 s63, s68, 224"); A(f"v_add_u32 v{VA}, s63, v{VA}")
    A(f"v_sub_u32 v{VB}, v8, v9"); A(f"v_lshl_add_u32 v{VB}, v{VB}, 3, v10")
    A(f"s_add_u32 s63, s68, {4*RS+256}"); A(f"v_add_u32 v{VB}, s63, v{VB}")
    A("s_lshl_b32 s63, s3, 1"); A(f"s_add_u32 s63, s63, {L_YB}")
    A(f"v_lshlrev_b32 v{VY}, 3, v1"); A(f"v_add_u32 v{VY}, s63, v{VY}")
    A("s_add_u32 s63, s68, 256"); A(f"v_lshlrev_b32 v{VU}, 1, v1"); A(f"v_add_u32 v{VU}, s63, v{VU}")
    A("s_and_b32 s63, s3, 1"); A("s_lshl_b32 s63, s63, 4"); A("s_lshr_b32 s59, s59, s63"); A("s_lshl_b32 s59, s59, 16")
def conv_bfrags(A):
    for jb in range(16):
        if len(A.lg) > 12: A.wait(lg=8)
        A(f"ds_read_b64_tr_b16 {bfr(jb,0,2)}, v{VB} offset:{256*jb+32}")
        A(f"ds_read_b64_tr_b16 {bfr(jb,2,2)}, v{VB} offset:{256*jb}")

def w2_setup(A):
    A("s_lshr_b32 s56, s5, 3"); A("s_xor_b32 s56, s56, s5"); A("s_and_b32 s56, s56, 3")
    A("v_lshrrev_b32 v10, 3, v1"); A("v_and_b32 v12, 7, v1")
    A(f"v_lshlrev_b32 v{VW}, 12, v10"); A(f"v_lshl_add_u32 v{VW}, v12, 4, v{VW}")
    A("s_and_b32 s61, s56, 1")
    A("v_lshrrev_b32 v10, 5, v1"); A("v_xor_b32 v12, s61, v10"); A(f"v_mul_u32_u24 v12, {112*1024}, v12")
    A(f"v_lshlrev_b32 v10, 14, v10"); A("v_sub_u32 v10, v12, v10"); A(f"v_add_u32 v10, {96*1024}, v10"); A(f"v_add_u32 v{VWC}, v10, v{VW}")
    A("s_mul_i32 s60, s3, 458752"); A("s_and_b32 s61, s5, 7"); A("s_lshl_b32 s61, s61, 7"); A("s_add_u32 s60, s60, s61")
    for f4 in range(4):
        A(f"s_xor_b32 s61, s56, {f4}"); A(f"s_mul_i32 s61, s61, {112*1024}"); A(f"s_add_u32 s{24+f4}, s60, s61")

XR, STR, QN = 16, 24, 32
def phase_conv(A, umark):
    A("s_and_b32 s62, s5, 1")
    A("s_lshl_b32 s63, s62, 12")
    A("s_sub_u32 s64, 12288, s63")
    A("s_lshl_b32 s65, s58, 14")
    A("v_lshlrev_b32 v10, 4, v0")
    for i in range(2):
        A(f"s_add_u32 s{66+i}, s{63+i}, s65")
        A(f"s_add_u32 s60, s{66+i}, {XP_OFF}")
        A(f"buffer_load_dwordx4 {v(XR+4*i,4)}, v10, {WS}, s60 offen sc1")
    for i in range(2): A(f"s_add_u32 s{63+i}, s{63+i}, {ST_OFF}")
    A("s_lshl_b32 s60, s3, 6"); A("s_sub_u32 s60, s60, 64"); A("s_cmp_eq_u32 s3, 0"); A("s_cselect_b32 s60, 192, s60")
    A("s_and_b32 s61, s5, 15"); A("s_mul_i32 s61, s61, 224"); A("s_add_u32 s60, s60, s61")
    A("v_and_b32 v11, 15, v1"); A("v_lshlrev_b32 v11, 1, v11"); A("v_add_u32 v11, s60, v11")
    for i in range(2): A(f"buffer_load_ushort v{60+i}, v11, {B1}, 0 offen offset:{32*i}")
    A("v_cmp_eq_u32 vcc, 63, v1")
    A("v_mov_b32 v12, 0"); A("v_mov_b32 v13, 0")
    A("s_cmp_lg_u32 s62, 0")
    A("s_cbranch_scc1 cv_h1")
    st = A.save(); bst = BK.save()
    ACCS = list(range(32, 56, 4)) + list(range(224, 256, 4))
    ends = []
    for half in range(2):
        A.restore(st); BK.restore(bst)
        A.label(f"cv_h{half}")
        groups = [(0, 1), (2, 3), (4, 5), (6, 7), (23,), (24, 25), (26, 27), (28, 29), (30, 31)] if half == 0 else \
                 [(7,)] + [(t, t+1) for t in range(8, 24, 2)]
        loc = {}
        for g in groups:
            if len(g) == 2:
                for t in g: loc[t] = len(loc)
        accof = {}
        n = 0
        for g in groups:
            for t in g: accof[t] = ACCS[n % len(ACCS)]; n += 1
        ml = []
        for g in groups:
            for jb in range(g[-1]//2, -1, -1):
                for t in g:
                    if t - 2*jb >= 0: ml.append((t, t - 2*jb, jb))
            ml.append(("end", g))
        order = []
        for m in ml:
            if m[0] != "end" and m[1] not in order: order.append(m[1])
        S = Sched(A)
        nxt = [0]
        def aread(force=False):
            dl = order[nxt[0]]; nxt[0] += 1
            A.wait_mark(umark - 3 + dl // 8)
            S.side(f"ds_read_b64_tr_b16 {v(AFR+4*dl,2)}, v{VA} offset:{128*dl}")
            S.side(f"ds_read_b64_tr_b16 {v(AFR+4*dl+2,2)}, v{VA} offset:{128*dl+32}")
        for _ in range(5): aread()
        stamp(A, "cv0")
        S.debt = 0
        bn = OPT["n_conv"]; blast = OPT["cv_start"] - OPT["cv_gap"]
        started = set(); cnt = 0
        nm = sum(1 for m in ml if m[0] != "end")
        for m in ml:
            if m[0] == "end":
                g = m[1]
                if len(g) == 1:
                    c = accof[g[0]]
                    S.add(f"v_add_f32_dpp v{c+2}, v{c+3}, v{c+2} wave_shr:1 {DP} bound_ctrl:0", 4)
                    S.add(f"v_add_f32_dpp v{c+1}, v{c+2}, v{c+1} wave_shr:1 {DP} bound_ctrl:0", 5)
                    continue
                for k_, t in enumerate(g): S.add(f"ds_read_u16_d16_hi v{12+k_}, v{VU} offset:{128*t}", 0)
                dly = 4
                for stg in (3, 2, 1):
                    for k_, t in enumerate(g):
                        if t > 0: S.add(f"v_cndmask_b32 v{56+k_}, v{accof[t]+stg}, v{accof[t-1]+stg}, vcc", dly)
                    dly += 1
                    for k_, t in enumerate(g):
                        c = accof[t]
                        if t > 0: S.add(f"v_add_f32_dpp v{c+stg-1}, v{56+k_}, v{c+stg-1} wave_ror:1 {DP}", dly)
                        else: S.add(f"v_add_f32_dpp v{c+stg-1}, v{c+stg}, v{c+stg-1} wave_shr:1 {DP} bound_ctrl:0", dly)
                    dly += 1
                for k_, t in enumerate(g): S.add(f"v_fma_f32 v{58+k_}, v{12+k_}, s59, v{accof[t]}", dly)
                S.add("v_cvt_pk_bf16_f32 v58, v58, v59", dly)
                S.add(f"ds_write_b16 v{VY}, v58 offset:{512*loc[g[0]]}", dly)
                S.add(f"ds_write_b16_d16_hi v{VY}, v58 offset:{512*loc[g[1]]}", dly)
                continue
            t, dl, jb = m
            while order.index(dl) + 3 >= nxt[0] and nxt[0] < len(order): aread()
            if nxt[0] < len(order) and S.debt == 0 and len(A.lg) <= 10: aread()
            elif bn > 0 and cnt - blast >= OPT["cv_gap"] and S.debt == 0:
                for tx in BK.next(): S.side(tx)
                bn -= 1; blast += OPT["cv_gap"]
            if cnt == nm - 40:
                for i in range(2): S.side(f"buffer_load_dwordx4 {v(STR+4*i,4)}, v10, {WS}, s{63+i} offen sc1")
            d = v(accof[t], 4)
            if t not in started:
                for _, tx in S.q: assert not (set(regs_of(tx)) & set(regs_of(d))), tx
            S.mfma(f"v_mfma_f32_16x16x32_bf16 {d}, {v(AFR+4*dl,4)}, {bfr(jb)}, {d if t in started else '0'}")
            started.add(t); cnt += 1
        stamp(A, "cv1")
        S.flush()
        print("half", half, "mfma", nm, "bulk left", bn)
        BK.emit(A, bn)
        if half == 0: A("s_branch cv_join")
        ends.append(A.save())
    A.label("cv_join")
    A.merge(ends)
    XF, QF, YR, YF = 64, 80, 96, 104
    for i in range(8):
        A(f"v_lshlrev_b32 v{XF+2*i}, 16, v{XR+i}"); A(f"v_and_b32 v{XF+2*i+1}, s6, v{XR+i}")
    def stchk():
        A(f"v_min_u32 v56, v{STR}, v{STR+2}"); A(f"v_min3_u32 v56, v56, v{STR+4}, v{STR+6}")
        A("v_cmp_eq_u32 vcc, 0, v56")
    stchk()
    A(f"v_add_u32 v11, {L_YB}, v10")
    A("s_mov_b32 s69, 0")
    A("s_nop 2")
    A("s_cbranch_vccz cv_stok")
    st = A.save()
    A.label("cv_stl")
    for i in range(2): A(f"buffer_load_dwordx4 {v(STR+4*i,4)}, v10, {WS}, s{63+i} offen sc1")
    A("s_add_u32 s69, s69, 1")
    stchk()
    A(f"s_cmp_ge_u32 s69, {POLL_MAX}"); A("s_cbranch_scc1 cv_stok"); A("s_nop 3"); A("s_cbranch_vccnz cv_stl")
    A.label("cv_stok")
    A.restore(st)
    for i in range(8):
        sp = v(STR + 2*(i//2), 2)
        A(f"v_pk_fma_f32 {v(QF+2*i,2)}, {v(XF+2*i,2)}, {sp}, {sp} op_sel:[0,0,1] op_sel_hi:[1,0,1]")
    for i in range(2): A(f"s_add_u32 s{66+i}, s{66+i}, {HP_OFF}")
    A.wait(lg=0)
    A("s_barrier")
    for i in range(2): A(f"ds_read_b128 {v(YR+4*i,4)}, v11 offset:{4096*i}")
    for g in range(2):
        for i in range(4*g, 4*g+4):
            A(f"v_lshlrev_b32 v{YF+2*i}, 16, v{YR+i}"); A(f"v_and_b32 v{YF+2*i+1}, s6, v{YR+i}")
        for i in range(4*g, 4*g+4): A(f"v_pk_fma_f32 {v(YF+2*i,2)}, {v(QF+2*i,2)}, {v(YF+2*i,2)}, {v(XF+2*i,2)}")
        for i in range(4*g, 4*g+4): A(f"v_cvt_pk_bf16_f32 v{YR+i}, v{YF+2*i}, v{YF+2*i+1}")
        A(f"buffer_store_dwordx4 {v(YR+4*g,4)}, v10, {WS}, s{66+g} offen sc1")
    stamp(A, "hst")
    return A.mark()

def j2_setup(JW, JR, t0, sx="s60"):
    x, y, z = t0, t0+1, t0+2
    o = [f"v_lshrrev_b32 v{x}, 3, v1", f"v_and_b32 v{y}, 7, v1",
         f"v_and_b32 v{z}, 1, v{x}", f"v_lshlrev_b32 v{z}, 2, v{z}", f"v_xor_b32 v{y}, v{y}, v{z}",
         f"v_lshlrev_b32 v{x}, 9, v{x}", f"v_add_u32 v{x}, s68, v{x}",
         f"v_lshl_add_u32 v{JW}, v{y}, 4, v{x}",
         f"v_xor_b32 v{y}, 2, v{y}", f"v_lshl_add_u32 v{JW+1}, v{y}, 4, v{x}",
         f"v_lshrrev_b32 v{x}, 2, v1", f"v_bfe_u32 v{y}, v{x}, 1, 2", f"v_and_b32 v{z}, 3, v1",
         f"v_lshlrev_b32 v{x}, 7, v{x}", f"v_lshl_add_u32 v{x}, v{z}, 3, v{x}", f"v_add_u32 v{x}, s68, v{x}"]
    for jl in range(4):
        o += [f"s_add_u32 {sx}, s3, {jl}", f"s_and_b32 {sx}, {sx}, 3", f"v_xor_b32 v{z}, {sx}, v{y}", f"v_lshl_add_u32 v{JR+jl}, v{z}, 5, v{x}"]
    return o
def j2_ops(n, JW, JR):
    ks = KSORD[n]; b = (n & 1) * 4 * RS
    w = [f"ds_write_b128 v{JW+(q>>1)}, {a(16*ks+4*q,4)} offset:{b+128*q}" for q in range(4)]
    r = [f"ds_read_b64_tr_b16 {a(16*ks+4*jl+2*h,2)}, v{JR+jl} offset:{b+2048*h}" for jl in range(4) for h in range(2)]
    return w, r
def j2_step(A, n):
    if len(A.lg) > 3: A.wait(lg=3)
    w, r = j2_ops(n, 16, 18)
    for o in w + r: A(o)

ONES = 224
A0, A1 = 6, 7
def j1(A):
    TR0, TR1, AW = 22, 23, 26
    A("s_lshl_b32 s60, s3, 1"); A("s_sub_u32 s60, s60, 2"); A("s_cmp_eq_u32 s3, 0"); A("s_cselect_b32 s60, 6, s60")
    A("s_cselect_b32 s61, 1, 2")
    A("s_lshl_b32 s62, s60, 5")
    A("v_lshrrev_b32 v28, 2, v1"); A("v_mul_u32_u24 v28, 224, v28"); A("v_and_b32 v29, 3, v1"); A(f"v_lshl_add_u32 v{A0}, v29, 3, v28")
    A(f"v_add_u32 v{A1}, 57344, v{A0}")
    A(f"v_add_u32 v{TR0}, s62, v{A0}"); A(f"v_add_u32 v{TR1}, 57344, v{TR0}")
    A("s_lshl_b32 s62, s60, 8"); A(f"s_add_u32 s62, s62, {L_AUG}")
    A("v_and_b32 v28, 15, v1"); A(f"v_lshlrev_b32 v{AW}, 4, v28"); A(f"v_add_u32 v{AW}, s62, v{AW}")
    A("v_mov_b32 v28, 0x3f803f80")
    for r in range(4): A(f"v_accvgpr_write_b32 a{ONES+r}, v28")
    A.wait(lg=0)
    A.label("j1_loop")
    F = 64
    def rd(ks):
        for h in range(2):
            A(f"ds_read_b64_tr_b16 {v(F+4*ks+2*h,2)}, v{TR0 if ks < 8 else TR1} offset:{(ks%8)*7168+3584*h}")
    for ks in range(7): rd(ks)
    for ks in range(16):
        c = 32 + 4*(ks & 1)
        A(f"v_mfma_f32_16x16x32_bf16 {v(c,4)}, {a(ONES,4)}, {v(F+4*ks,4)}, {'0' if ks < 2 else v(c,4)}")
        if ks + 7 < 16: rd(ks + 7)
    for r in (TR0, TR1): A(f"v_add_u32 v{r}, 32, v{r}")
    A("v_lshl_or_b32 v42, v60, 16, v60"); A("v_mov_b32 v43, 0"); A("v_mov_b32 v60, v61")
    A("v_add_f32 v32, v32, v36")
    A("v_cvt_pk_bf16_f32 v40, v32, v32"); A("v_and_b32 v33, s6, v40"); A("v_sub_f32 v33, v32, v33"); A("v_cvt_pk_bf16_f32 v41, v33, v33")
    A(f"ds_write_b128 v{AW}, v[40:43]")
    A(f"v_add_u32 v{AW}, 256, v{AW}")
    A("s_sub_u32 s61, s61, 1"); A("s_cmp_lg_u32 s61, 0")
    A.wait(lg=0)
    A("s_cbranch_scc1 j1_loop")

def phase_syncb(A, hmark):
    assert BK.n >= 32
    BK.emit(A, OPT["n_b1"])
    for o in j2_setup(16, 18, 24): A(o)
    A("v_mov_b32 v28, 2"); A("v_mov_b32 v29, 0")
    A("s_lshl_b32 s63, s2, 6"); A(f"s_add_u32 s63, s63, {FL_OFF}")
    for n in range(OPT["j2a"]): j2_step(A, n)
    A.wait_mark(hmark)
    stamp(A, "hdr")
    A("s_barrier")
    A("s_cmp_lg_u32 s3, 0"); A("s_cbranch_scc1 sb_nf")
    st = A.save()
    A("s_mov_b64 exec, 1")
    A(f"buffer_store_dword v28, v29, {WS}, s63 offen sc1")
    A("s_mov_b64 exec, -1")
    A.label("sb_nf")
    A.restore(st)
    nb = OPT["n_b2"]
    BK.emit(A, nb // 2, OPT["win"])
    j1(A)
    BK.emit(A, nb - nb // 2, OPT["win"])
    for n in range(OPT["j2a"], OPT["j2n"]): j2_step(A, n)
    assert BK.n >= 32 + 4 * OPT["j2n"]
    A("s_lshl_b32 s62, s4, 1"); A("s_lshr_b32 s63, s5, 4"); A("s_add_u32 s62, s62, s63")
    A("s_add_u32 s63, s62, 4"); A("s_bfe_u32 s63, s63, 0x10003"); A("s_lshl_b32 s63, s63, 9"); A(f"s_add_u32 s63, s63, {FL_OFF}")
    A("s_add_u32 s64, s63, 8192")
    A("v_lshrrev_b32 v28, 3, v1"); A("v_and_b32 v29, 7, v1"); A("v_lshlrev_b32 v28, 10, v28"); A("v_lshl_add_u32 v28, v29, 6, v28")
    A("s_lshl_b32 s62, s62, 2"); A("s_add_u32 s62, s62, s3")
    A("s_lshl_b32 s60, s62, 8"); A(f"s_add_u32 s60, s60, {HP_OFF}")
    stamp(A, "bw")
    poll(A, "sb_poll", [(30, 28, WS, "s63", 0), (31, 28, WS, "s64", 0)], 2)
    stamp(A, "bpoll")

HF, AC1, AR, SA = 16, 144, 200, 224
def flagc(A, val):
    A(f"v_mov_b32 v5, {val}")
    A("s_mov_b64 exec, 1")
    A(f"buffer_store_dword v5, v4, {WS}, s65 offen sc1")
    A("s_mov_b64 exec, -1")
    return 16

def level_of(i): return LV.index(i // 2) + 1

def phase_g1(A, prog):
    passes = [st_[1] for st_ in prog if st_[0] == 'mm']
    AG = 0
    def hload(ks, S=None):
        for hh in range(2):
            e = S.side if S else A
            e(f"buffer_load_dwordx4 {v(HF+8*ks+4*hh,4)}, v{VQ}, {WS}, s60 offen sc1")
            if not (ks == 15 and hh == 1): e("s_add_u32 s60, s60, 65536")
    PRE = OPT["pre"]
    for ks in range(PRE): hload(ks)
    A("v_and_b32 v10, 15, v1"); A("v_lshlrev_b32 v10, 4, v10"); A(f"v_add_u32 v10, {L_AUG}, v10"); A(f"v_mov_b32 v{AG}, {L_ZB}")
    A("v_cmp_gt_u32 vcc, 16, v1"); A(f"v_cndmask_b32 v{AG}, v{AG}, v10, vcc")
    A("s_and_b32 s61, s5, 15"); A("s_lshl_b32 s64, s62, 4"); A("s_add_u32 s64, s64, s61"); A("s_mul_i32 s64, s64, 7168")
    A(f"s_add_u32 s64, s64, {H2_OFF}"); A("s_add_u32 s66, s64, 4096")
    A("s_lshl_b32 s65, s2, 6"); A("s_lshl_b32 s61, s3, 4"); A("s_add_u32 s65, s65, s61"); A(f"s_add_u32 s65, s65, {FL_OFF+4}")
    A("v_mov_b32 v4, 0")
    g2_setup(A)
    AUG = 228
    A("s_barrier")
    for i in range(7): A(f"ds_read_b128 {a(AUG+4*i,4)}, v{AG} offset:{256*i}")
    def hf(tt, ks): return v(HF+8*ks+4*tt, 4)
    def acc(i, tt): return AC1 + 8*i + 4*tt
    seq = [(ks, i) for p in passes for ks in range(16) for i in p]
    S = Sched(A)
    NSL = 6
    rd = [0]; used = [0]
    issn = {}
    def slot(f): return AR + 4*(f % NSL)
    def can_read(): return rd[0] < 2*len(seq) and rd[0]//2 < used[0] + NSL
    def aread():
        f, h = rd[0] // 2, rd[0] & 1; ks, i = seq[f]; rd[0] += 1
        S.side(f"ds_read_b64_tr_b16 {v(slot(f)+2*h,2)}, v{A0 if ks < 8 else A1} offset:{(ks%8)*7168+3584*h+32*i}")
        if h: issn[f] = S.n
    def need(f):
        while rd[0] < 2*f + 2: aread()
        def pos(g):
            r = ("v", slot(g)+2)
            for k_, (d, sm) in enumerate(A.lg):
                if r in d: return k_
            return None
        if pos(f) is None: return
        g = f
        while g + 1 in issn and issn[g+1] <= S.n - OPT["lgd"]: g += 1
        n = 0 if any(sm for _, sm in A.lg) else len(A.lg) - 1 - pos(g)
        A.wait(lg=n); S.debt += 4
    def swaps(ks):
        for r in range(2): S.side(f"v_swap_b32 v{HF+8*ks+2+r}, v{HF+8*ks+4+r}")
    for _ in range(8): aread()
    swaps(0)
    S.debt = 0
    K0, K1, SS, BA, GT = 240, 242, 244, 246, 224
    def gelu_ops(vals, tt_of, pk):
        ops = []
        n = len(vals)
        if pk:
            P = range(0, n, 2)
            def bc(base, tt): return v(base, 2), tt
            for k in P: ops.append(f"v_pk_mul_f32 {v(GT+k,2)}, {v(vals[k],2)}, {v(vals[k],2)}")
            for k in P:
                t = tt_of[k]
                ops.append(f"v_pk_fma_f32 {v(GT+k,2)}, {v(GT+k,2)}, {v(K1,2)}, {v(K0,2)} op_sel:[0,{t},{t}] op_sel_hi:[1,{t},{t}]")
            for k in P: ops.append(f"v_pk_mul_f32 {v(GT+k,2)}, {v(GT+k,2)}, {v(vals[k],2)}")
            for k in range(n): ops.append(f"v_exp_f32 v{GT+k}, v{GT+k}")
            for k in P:
                t = tt_of[k]
                ops.append(f"v_pk_fma_f32 {v(GT+k,2)}, {v(GT+k,2)}, {v(SS,2)}, {v(SS,2)} op_sel:[0,{t},{t}] op_sel_hi:[1,{t},{t}]")
            for k in range(n): ops.append(f"v_rcp_f32 v{GT+k}, v{GT+k}")
            for k in P: ops.append(f"v_pk_mul_f32 {v(GT+k,2)}, {v(GT+k,2)}, {v(vals[k],2)}")
        else:
            for k in range(n): ops.append(f"v_mul_f32 v{GT+k}, v{vals[k]}, v{vals[k]}")
            for k in range(n): ops.append(f"v_fma_f32 v{GT+k}, v{GT+k}, v{K1+tt_of[k]}, v{K0+tt_of[k]}")
            for k in range(n): ops.append(f"v_mul_f32 v{GT+k}, v{GT+k}, v{vals[k]}")
            for k in range(n): ops.append(f"v_exp_f32 v{GT+k}, v{GT+k}")
            for k in range(n): ops.append(f"v_fma_f32 v{GT+k}, v{GT+k}, v{SS+tt_of[k]}, v{SS+tt_of[k]}")
            for k in range(n): ops.append(f"v_rcp_f32 v{GT+k}, v{GT+k}")
            for k in range(n): ops.append(f"v_mul_f32 v{GT+k}, v{GT+k}, v{vals[k]}")
        return ops
    def outreg(i, tt): return acc(i & ~1, tt) + 2*(i & 1) if i < 6 else acc(6, 0) + 2*tt
    def unit_ops(i, tt, pk):
        c = acc(i, tt); ops = gelu_ops([c, c+1, c+2, c+3], [tt]*4, pk)
        o = outreg(i, tt)
        ops += [f"v_cvt_pk_bf16_f32 v{o}, v{GT}, v{GT+1}", f"v_cvt_pk_bf16_f32 v{o+1}, v{GT+2}, v{GT+3}"]
        return ops
    def store_op(piece):
        r = acc(piece & ~1, piece & 1) if piece < 6 else acc(6, 0)
        return f"buffer_store_dwordx4 {v(r,4)}, v{VL16}, {WS}, {'s64' if piece < 4 else 's66'} offen offset:{(piece%4)*1024} sc1"
    def stats_ops():
        T = 10
        ops = ["v_and_b32 v10, 15, v1", "v_lshrrev_b32 v11, 4, v1", "v_lshlrev_b32 v11, 2, v11", "v_sub_u32 v10, v10, v11",
               "v_mov_b32 v11, 1.0", "v_mov_b32 v12, 0", "v_mov_b32 v13, 0"]
        for r in range(4):
            ops.append(f"v_cmp_eq_u32 vcc, {r}, v10")
            for tt in range(2): ops.append(f"v_cndmask_b32 v{12+tt}, v{12+tt}, v{SA+8+4*tt+r}, vcc")
        return ops
    def stats_ops2():
        ops = []
        def both(f):
            for tt in range(2): ops.append(f(tt))
        m = lambda tt: SA + 4*tt; va = lambda tt: SA + 8 + 4*tt; s1 = lambda tt: SA + 1 + 4*tt; t1 = lambda tt: SA + 2 + 4*tt
        def rb(d, sr):
            both(lambda tt: f"v_cvt_pk_bf16_f32 v{d(tt)}, v{sr(tt)}, v{sr(tt)}"); both(lambda tt: f"v_lshlrev_b32 v{d(tt)}, 16, v{d(tt)}")
        both(lambda tt: f"v_mul_f32 v{m(tt)}, 0xbb000000, v{m(tt)}")
        both(lambda tt: f"v_mul_f32 v{va(tt)}, 0x3b000000, v{va(tt)}")
        both(lambda tt: f"v_fma_f32 v{va(tt)}, -v{m(tt)}, v{m(tt)}, v{va(tt)}")
        rb(s1, va)
        both(lambda tt: f"v_add_f32 v{s1(tt)}, 0x3727c5ac, v{s1(tt)}")
        rb(s1, s1)
        both(lambda tt: f"v_sqrt_f32 v{s1(tt)}, v{s1(tt)}")
        both(lambda tt: f"v_cvt_pk_bf16_f32 v{t1(tt)}, v{m(tt)}, v{m(tt)}")
        rb(s1, s1)
        both(lambda tt: f"v_rcp_f32 v{K0+tt}, v{s1(tt)}")
        both(lambda tt: f"v_and_b32 v{t1(tt)}, s6, v{t1(tt)}")
        both(lambda tt: f"v_mul_f32 v{va(tt)}, v{va(tt)}, v{K0+tt}")
        both(lambda tt: f"v_mul_f32 v{va(tt)}, v{va(tt)}, v{K0+tt}")
        rb(va, va)
        both(lambda tt: f"v_add_f32 v{va(tt)}, 0x3727c5ac, v{va(tt)}")
        rb(va, va)
        both(lambda tt: f"v_sqrt_f32 v{va(tt)}, v{va(tt)}")
        both(lambda tt: f"v_sub_f32 v{m(tt)}, v{m(tt)}, v{t1(tt)}")
        rb(va, va)
        both(lambda tt: f"v_mul_f32 v{SS+tt}, v{s1(tt)}, v{va(tt)}")
        both(lambda tt: f"v_cvt_pk_bf16_f32 v{BA+4*tt}, v{t1(tt)}, v{m(tt)}")
        both(lambda tt: f"v_rcp_f32 v{K0+tt}, v{SS+tt}")
        both(lambda tt: f"v_and_b32 v{t1(tt)}, s6, v{SS+tt}")
        both(lambda tt: f"v_sub_f32 v{s1(tt)}, v{SS+tt}, v{t1(tt)}")
        both(lambda tt: f"v_mov_b32 v{BA+4*tt+1}, v{BA+4*tt}")
        both(lambda tt: f"v_cvt_pk_bf16_f32 v{BA+4*tt+2}, v{t1(tt)}, v{s1(tt)}")
        both(lambda tt: f"v_mov_b32 v{BA+4*tt+3}, 0")
        both(lambda tt: f"v_mul_f32 v{K1+tt}, v{K0+tt}, v{K0+tt}")
        both(lambda tt: f"v_mul_f32 v{K0+tt}, {f2u(C0)}, v{K0+tt}")
        both(lambda tt: f"v_mul_f32 v{K1+tt}, v{K1+tt}, v{K0+tt}")
        both(lambda tt: f"v_mul_f32 v{K1+tt}, {f2u(0.044715)}, v{K1+tt}")
        return ops
    def fold(i):
        for tt in range(2):
            d = v(acc(i, tt), 4)
            A(f"v_mfma_f32_16x16x32_bf16 {d}, {a(AUG+4*i,4)}, {v(BA+4*tt,4)}, {d}")
        return 16
    marks = MARKS
    done = []
    state = dict(stats=False)
    def finish_unit(i, tt):
        done.append((i, tt))
        if i == 6:
            if tt == 1: A(store_op(6)); marks[level_of(6)] = A.mark(); return 4
        elif i & 1:
            A(store_op((i & ~1) + tt)); marks[level_of(i)] = A.mark(); return 4
        return 0
    avail = []
    def pending(): return sorted([u for u in avail if u not in done], key=lambda u: (level_of(u[0]), u[1], u[0]))
    def queue_units():
        for (i, tt) in pending():
            for o in unit_ops(i, tt, False): S.add(o, 0)
            def fu(i=i, tt=tt): return finish_unit(i, tt)
            S.add(fu, 0)
    def drop_units():
        while S.q and not (state["stats"]):
            t = S.q.popleft()[1]
            t() if callable(t) else A(t)
        if S.q and not (isinstance(S.q[0][1], str) and S.q[0][1].startswith(f"v_mul_f32 v{GT}, v") and S.q[0][1].split()[2].rstrip(',') == S.q[0][1].split()[3]):
            while S.q:
                t = S.q.popleft()[1]
                if callable(t): t(); break
                A(t)
        S.q.clear()
    first = True
    f = 0
    for step in prog:
        if step[0] == "mm":
            p = step[1]; o_ = step[2] if len(step) > 2 else {}
            ev = o_.get("ev", {}); bn = o_.get("bulk", 0); room = o_.get("room", 8)
            cnt = [0]
            def mf(text):
                nonlocal bn
                if cnt[0] in ev: S.debt += ev[cnt[0]](A) or 0
                S.A(text); S.n += 1
                b = room - S.debt; S.debt = 0
                if can_read() and b >= 4: aread(); b -= S.debt; S.debt = 0
                if rd[0] < 2*used[0] + 8 and can_read() and b >= 4: aread(); b -= S.debt; S.debt = 0
                if bn > 0 and BK.left() and cnt[0] % OPT["g1_gap"] == OPT["g1_gap"] - 1:
                    for tx in BK.next(): A(tx); b -= 4
                    bn -= 1
                while S.q and S.q[0][0] <= S.n:
                    t_ = S.q[0][1]
                    if callable(t_):
                        S.q.popleft(); b -= t_(); continue
                    c = cost(t_)
                    if c > b and not (b >= 4 and c == 8): break
                    S.q.popleft(); A(t_); b -= c
                if b < 0: S.debt = -b
                cnt[0] += 1
            for ks in range(16):
                if first:
                    if ks + PRE < 16: hload(ks + PRE, S)
                    for tt in range(2):
                        h = hf(tt, ks)
                        mf(f"v_mfma_f32_16x16x32_bf16 {v(SA+4*tt,4)}, {a(ONES,4)}, {h}, {'0' if ks == 0 else v(SA+4*tt,4)}")
                        mf(f"v_mfma_f32_16x16x32_bf16 {v(SA+8+4*tt,4)}, {h}, {h}, {'0' if ks == 0 else v(SA+8+4*tt,4)}")
                    if ks == 14:
                        for t in stats_ops()[:7]: S.add(t, 0)
                    if ks == 15:
                        for t in stats_ops()[7:]: S.add(t, 3)
                        def red():
                            for tt in range(2): A(f"v_mfma_f32_16x16x4_f32 {v(SA+8+4*tt,4)}, v11, v{12+tt}, 0")
                            S.q[0] = (S.n + 5, S.q[0][1])
                            return 16
                        S.add(red, 2)
                        for t in stats_ops2(): S.add(t, 0)
                        def sdone(p=p):
                            for i in p: fold(i)
                            state["stats"] = True
                            return 8 * len(p)
                        S.add(sdone, 0)
                for n_, i in enumerate(p):
                    need(f)
                    if first and ks < 15 and n_ == len(p) - 1: swaps(ks + 1)
                    for tt in range(2):
                        d = v(acc(i, tt), 4)
                        if tt == 1: used[0] = f + 1
                        mf(f"v_mfma_f32_16x16x32_bf16 {d}, {v(slot(f),4)}, {hf(tt,ks)}, {'0' if ks == 0 else d}")
                    f += 1
            if first:
                avail += [(i, tt) for i in p for tt in range(2)]
                queue_units()
            else:
                drop_units()
                for i in p: fold(i)
                avail += [(i, tt) for i in p for tt in range(2)]
                queue_units()
            first = False
        elif step[0] == "fin":
            drop_units()
            todo = [u for u in pending() if level_of(u[0]) <= step[1]]
            print("fin", step[1], "packed units", todo)
            extra = deque(step[2]()) if len(step) > 2 else deque()
            while todo:
                us = todo[:2]; todo = todo[2:]
                vals = [acc(i, tt) + r for i, tt in us for r in range(4)]
                for n_, o in enumerate(gelu_ops(vals, [tt for i, tt in us for r in range(4)], True)):
                    A(o)
                    if extra and n_ % 3 == 2:
                        e_ = extra.popleft(); e_(A) if callable(e_) else A(e_)
                for k_, (i, tt) in enumerate(us):
                    o = outreg(i, tt)
                    A(f"v_cvt_pk_bf16_f32 v{o}, v{GT+4*k_}, v{GT+4*k_+1}"); A(f"v_cvt_pk_bf16_f32 v{o+1}, v{GT+4*k_+2}, v{GT+4*k_+3}")
                    finish_unit(i, tt)
            while extra:
                e_ = extra.popleft(); e_(A) if callable(e_) else A(e_)
            queue_units()
        elif step[0] == "call":
            step[1](A)
        elif step[0] == "stamp":
            stamp(A, step[1])
    print("bulk left after gemm1", BK.left())
    BK.emit(A, 88)

MARKS = {}
def pub(l):
    def f(A):
        A.wait_mark(MARKS[l]); return flagc(A, l) + 4
    return f

VL16B, VFL = 14, 15
def g2_setup(A):
    A("s_lshl_b32 s16, s4, 2"); A("s_lshr_b32 s17, s5, 3"); A("s_add_u32 s16, s16, s17"); A("s_lshl_b32 s16, s16, 1")
    A("s_lshl_b32 s17, s16, 4"); A("s_lshl_b32 s18, s3, 2"); A("s_add_u32 s17, s17, s18")
    for k in range(4):
        A(f"s_xor_b32 s19, s56, {k}"); A("s_add_u32 s19, s19, s17"); A("s_mul_i32 s19, s19, 7168")
        A(f"s_add_u32 s{8+k}, s19, {H2_OFF}"); A(f"s_add_u32 s{12+k}, s19, {H2_OFF + 16*7168}")
    A(f"v_add_u32 v{VL16B}, 4096, v{VL16}")
    A("s_lshr_b32 s17, s5, 4"); A("s_lshl_b32 s17, s17, 4"); A("s_add_u32 s17, s17, s18"); A("s_lshl_b32 s17, s17, 3"); A("s_add_u32 s17, s17, s4")
    A("s_lshl_b32 s17, s17, 6"); A("s_bfe_u32 s18, s5, 0x10003"); A("s_lshl_b32 s18, s18, 5"); A("s_add_u32 s17, s17, s18")
    A(f"s_add_u32 s17, s17, {FL_OFF+4}")
    A("v_and_b32 v11, 3, v1"); A("v_bfe_u32 v10, v1, 2, 1"); A(f"v_lshlrev_b32 v{VFL}, 9, v11"); A(f"v_lshl_add_u32 v{VFL}, v10, 4, v{VFL}")

def hreg(level, rho, f4, tt):
    a_ = LV[level-1]
    if a_ < 3: return HF + 64*([x for x in LV if x < 3].index(a_) & 1) + 16*f4 + 8*rho + 4*tt
    return 208 + 16*(f4 >> 1) + 8*rho + 4*(f4 & 1)
def hloads(level):
    out = []; a_ = LV[level-1]
    for f4 in range(4):
        for rho in range(2):
            for tt in (range(2) if a_ < 3 else (0,)):
                piece = 2*a_ + tt
                out.append(f"buffer_load_dwordx4 {v(hreg(level,rho,f4,tt),4)}, v{VL16 if piece < 4 else VL16B}, {WS}, s{8+4*rho+f4} offen offset:{(piece%4)*1024} sc1")
    return out
PV = 13
def poll_issue(A): A(f"buffer_load_dword v{PV}, v{VFL}, {WS}, s17 offen sc1"); return 4
def poll_check(level):
    def f(A):
        A(f"v_cmp_gt_u32 vcc, {level}, v{PV}")
        A("s_nop 4")
        A(f"s_cbranch_vccz g2_ok{level}")
        st = A.save()
        poll(A, f"g2_p{level}", [(PV, VFL, WS, "s17", 0)], level)
        A.label(f"g2_ok{level}")
        A.restore(st)
        return 16
    return f

def phase_g2(A, ev):
    AC2 = 144
    def acc(T, jl): return AC2 + 16*T + 4*jl
    HR, BR, RW, RR, VO = 240, 248, 6, 9, 10
    JW, JR = 250, 252
    S = Sched(A)
    started = set()
    jq = deque()
    def mm(n, Ts):
        ks = KSORD[n]; level = LV.index(ks // 4) + 1
        for T in Ts:
            rho, tt = T >> 1, T & 1
            hr = hreg(level, rho, ks % 4, tt) if ks < 12 else 208 + 16*(ks-12) + 8*rho + 4*tt
            if ks >= 12 and tt == 0:
                for r in range(2): S.side(f"v_swap_b32 v{hr+2+r}, v{hr+4+r}")
            for jl in range(4):
                d = v(acc(T, jl), 4)
                if jq:
                    o = jq.popleft()
                    if o: S.side(o); S.debt += 4 * o.startswith("ds_write")
                S.mfma(f"v_mfma_f32_16x16x32_bf16 {d}, {a(16*ks+4*jl,4)}, {v(hr,4)}, {d if (T,jl) in started else '0'}")
                started.add((T, jl))
    def epi_loads():
        return [f"buffer_load_dwordx4 {v(HR+4*rho,4)}, v{VQ}, {WS}, s19 offen offset:{256*rho} sc1" for rho in range(2)] + \
               [f"buffer_load_dwordx2 {v(BR,2)}, v11, {B2}, s18 offen"]
    for o in j2_setup(JW, JR, 240, "s62"): A(o)
    su = ["s_and_b32 s18, s5, 7", "s_lshl_b32 s18, s18, 2", "s_add_u32 s18, s18, s3",
          "s_lshl_b32 s19, s18, 16", "s_lshl_b32 s60, s16, 8", "s_add_u32 s19, s19, s60", f"s_add_u32 s19, s19, {HP_OFF}",
          "s_lshl_b32 s18, s18, 5",
          "v_lshrrev_b32 v11, 4, v1", "v_lshlrev_b32 v11, 3, v11",
          "v_and_b32 v12, 15, v1", f"v_lshl_add_u32 v{VO}, v12, 11, v11",
          "s_lshl_b32 s60, s16, 15", "s_add_u32 s60, s60, s18", "s_add_u32 s61, s60, 32768"]
    for jl in range(1, 4):
        su += [f"s_add_u32 s62, s3, {jl}", "s_and_b32 s62, s62, 3", "s_mul_i32 s62, s62, 6144", f"v_add_u32 v{RW+jl-1}, s62, v{VL16}"]
    su += ["s_mul_i32 s62, s3, 6144", f"v_add_u32 v{RR}, s62, v{VL16}"]
    for o in su: A(o)
    jn = OPT["j2n"]
    assert jn >= 3
    def events(n):
        for e in ev.get(n, []):
            if callable(e): S.flush(); e(A)
            elif e[0] == "loads":
                for t_ in hloads(e[1]): S.add(t_)
            elif e[0] == "epi":
                for t_ in epi_loads(): S.add(t_)
            elif e[0] == "stamp": stamp(A, e[1])
            elif e[0] == "bar": A("s_barrier")
    for n in range(11):
        events(n)
        if jn + n < 14:
            w, r = j2_ops(jn + n, JW, JR)
            jq.extend([w[0], None, w[1], None, w[2], None, w[3], None] + r)
        mm(n, range(4))
    events(11)
    S.flush()
    def wr(rho):
        return [f"ds_write_b128 v{RW+jl-1}, {v(acc(2*rho+tt,jl),4)} offset:{rho*24576+(jl-1)*2048+tt*1024}" for tt in range(2) for jl in range(1, 4)]
    for n in (11, 12, 13): mm(n, (0, 1))
    for t in wr(0): S.add(t, 3)
    for n in (11, 12, 13): mm(n, (2, 3))
    S.flush()
    stamp(A, "g2end")
    X = 16
    def unp(dst, src):
        A(f"v_lshlrev_b32 v{dst}, 16, v{src}"); A(f"v_and_b32 v{dst+1}, s6, v{src}")
    for h in range(2): unp(X+2*h, BR+h)
    for i in range(8): unp(X+4+2*i, HR+i)
    for t in wr(1): A(t)
    A.wait(lg=0)
    A("s_barrier")
    R = 64
    for rho in range(2):
        for k in range(6): A(f"ds_read_b128 {v(R+24*rho+4*k,4)}, v{RR} offset:{rho*24576+1024*k}")
    for T in range(4):
        rho, tt = T >> 1, T & 1
        c = acc(T, 0)
        for k in range(3):
            for h in range(2): A(f"v_pk_add_f32 {v(c+2*h,2)}, {v(c+2*h,2)}, {v(R+24*rho+8*k+4*tt+2*h,2)}")
        for add in (X, X+4+4*T):
            for h in range(2): A(f"v_cvt_pk_bf16_f32 v{c+2*h}, v{c+2*h}, v{c+2*h+1}")
            for h in range(2):
                A(f"v_and_b32 v{c+2*h+1}, s6, v{c+2*h}"); A(f"v_lshlrev_b32 v{c+2*h}, 16, v{c+2*h}")
            for h in range(2): A(f"v_pk_add_f32 {v(c+2*h,2)}, {v(c+2*h,2)}, {v(add+2*h,2)}")
        A(f"v_cvt_pk_bf16_f32 v{c}, v{c}, v{c+1}")
        A(f"v_cvt_pk_bf16_f32 v{c+1}, v{c+2}, v{c+3}")
        A(f"buffer_store_dwordx2 {v(c,2)}, v{VO}, {OUT}, s{60+rho} offen offset:{1024*tt}")

def stamp_end(A):
    if not common.STAMP: return
    A("s_waitcnt vmcnt(0)")
    A("s_memrealtime s[100:101]")
    A("s_memtime s[62:63]")
    A("s_lshl_b32 s60, s2, 9"); A("s_lshl_b32 s61, s3, 7"); A("s_add_u32 s60, s60, s61"); A(f"s_add_u32 s60, s60, {STAMP_OFF}")
    A("v_mov_b32 v4, 0")
    A("s_waitcnt lgkmcnt(0)")
    A("s_mov_b64 exec, 1")
    regs = [98, 100] + [SB+2*i for i in range(NSTAMP)] + [62]
    for k, r in enumerate(regs):
        A(f"v_mov_b32 v5, s{r}")
        A(f"buffer_store_dword v5, v4, {WS}, s60 offen offset:{4*k}")

def build(path):
    A = Asm()
    kn = NAME + "_kernel"
    A.raw(kernel_head(kn))
    A.label("code_lo")
    A("s_cmp_ge_u32 s2, 256")
    A("s_cbranch_scc1 k_exit")
    if common.STAMP:
        A("s_memrealtime s[98:99]"); stamp(A, 0)
    um = phase_p(A)
    hm = phase_conv(A, um)
    phase_syncb(A, hm)
    prog = [("mm", (0, 1, 2)), ("stamp", "p1"), ("fin", 1), ("stamp", "f1"), ("mm", (3, 6), dict(bulk=16)), ("fin", 2), ("call", pub(1)), ("stamp", "f2"),
            ("mm", (4, 5), dict(bulk=16, ev={36: poll_issue})), ("stamp", "p3"), ("call", pub(2)), ("call", poll_check(1)), ("stamp", "c1"),
            ("fin", 4, lambda: hloads(1)), ("call", poll_issue), ("stamp", "g1end")]
    phase_g1(A, prog)
    ev = {1: [("stamp", "s1"), pub(3), poll_check(2), ("loads", 2), ("stamp", "c2")], 3: [poll_issue], 4: [("stamp", "s4"), pub(4)],
          5: [poll_check(3), ("loads", 3), ("stamp", "c3")], 6: [poll_issue], 8: [("stamp", "s8"), poll_check(4), ("loads", 4), ("epi",), ("stamp", "c4")],
          10: [("bar",), ("stamp", "s10")]}
    phase_g2(A, ev)
    stamp_end(A)
    A.label("k_exit")
    A("s_endpgm")
    A.label("code_end")
    head = (["; stamps: " + " ".join(common.STAMPS)] if common.STAMP else []) + ["; H3 ssm-conv block + channel MLP as one persistent launch (prep | long conv | GEMM1+GELU | GEMM2), flag hand-offs",
            f"; @launch grid=(256,1,1) block=(256,1,1) lds={LDS_BYTES}"]
    txt = "\n".join(head) + '\n.amdgcn_target "amdgcn-amd-amdhsa--gfx950"\n.text\n' + A.text() + '.section .rodata,"a"\n' + kernel_desc(kn, 512, 102, accum=256)
    open(path, "w").write(txt)
    print("nops", A.nops, "lines", len(A.lines))

if __name__ == "__main__":
    common.STAMPS = "karg k ust udr apoll cv0 cv1 hst hdr bpoll p1 g1end g2end".split()
    for a_ in sys.argv[2:]:
        if a_.startswith("stamps="): common.STAMPS = a_[7:].split(",")
        elif "=" in a_: k_, v_ = a_.split("="); assert k_ in OPT; OPT[k_] = int(v_)
    build(sys.argv[1])
```
